```python
import torch

def _softmax(x, axis=-1):
    return torch.softmax(x, dim=axis)
def _gelu(x):
    return torch.nn.functional.gelu(x, approximate="tanh")
def _silu(x):
    return torch.nn.functional.silu(x)
def _sigmoid(x):
    return torch.sigmoid(x)
def _layernorm(x, axis=-1, eps=1e-5):
    m = x.mean(dim=axis, keepdim=True)
    v = x.var(dim=axis, keepdim=True, unbiased=False)
    return (x - m) / torch.sqrt(v + eps)
def _scatter_add(tgt, idx, src, axis=0):
    return tgt.clone().index_add_(axis, idx, src)
def _segment_sum(src, seg, n):
    out = torch.zeros((n,) + src.shape[1:], dtype=src.dtype)
    return out.index_add_(0, seg, src)
def _pad(x, pw):
    flat = tuple(v for pair in reversed(pw) for v in pair)
    return torch.nn.functional.pad(x, flat)

kernel_name = 'standalone__sliding_block_cached__decode'

def setup_inputs():

    _w = (lambda a: (lambda t: t.to(torch.bfloat16) if t.is_floating_point() else t)(torch.as_tensor(a)))
    B, Sq, D = 2, 1, 512
    Hq, Hkv, Sk, Dh = 32, 8, 32768, 128
    assert Hq % Hkv == 0, (Hq, Hkv)
    return {
        "x": _w((lambda *s: torch.randn(*s, dtype=torch.bfloat16) * 0.8)(B, Sq, D)),
        "k_cache": _w((lambda *s: torch.randn(*s, dtype=torch.bfloat16) * 0.8)(B, Hkv, Sk, Dh)),
        "v_cache": _w((lambda *s: torch.randn(*s, dtype=torch.bfloat16) * 0.05)(B, Hkv, Sk, Dh)),
        "wq": _w((lambda *s: torch.randn(*s, dtype=torch.bfloat16) * 0.8)(D, Hq * Dh) * (D ** -0.5)),
        "wo": _w((lambda *s: torch.randn(*s, dtype=torch.bfloat16) * 0.05)(Hq * Dh, D) * ((Hq * Dh) ** -0.5)),
    }

def reference(x, k_cache, v_cache, wq, wo):
    B, Sq, D = x.shape
    Hq, Dh = 32, 128
    Hkv, Sk = k_cache.shape[1], k_cache.shape[2]
    W = min(4096, max(256, Sk // 4))
    rep = Hq // Hkv
    q = (lambda x, *d: x.permute(*d))((x @ wq).reshape(B, Sq, Hq, Dh), 0, 2, 1, 3)
    k = (lambda x, n, axis: torch.repeat_interleave(x, n, dim=axis))(k_cache[:, :, Sk - W:, :], rep, axis=1)
    v = (lambda x, n, axis: torch.repeat_interleave(x, n, dim=axis))(v_cache[:, :, Sk - W:, :], rep, axis=1)
    scores = torch.einsum("bhqd,bhkd->bhqk", q, k) * (Dh ** -0.5)
    p = _softmax(scores, axis=-1)
    o = torch.einsum("bhqk,bhkd->bhqd", p, v)
    return (lambda x, *d: x.permute(*d))(o, 0, 2, 1, 3).reshape(B, Sq, Hq * Dh) @ wo
```

```python
KNAME = "standalone__sliding_block_cached__decode_kernel"
STAMP_OFF = 536870912 - (8 << 20)
class Asm:
    def __init__(self):
        self.lines = []
        self.nlabel = 0
    def __call__(self, s):
        for l in s.strip("\n").split("\n"):
            self.lines.append("    " + l.strip() if not l.strip().endswith(":") else l.strip())
    def label(self, name):
        self.lines.append(name + ":")
    def newlabel(self, p="L"):
        self.nlabel += 1
        return f"{p}_{self.nlabel}"
    def text(self):
        return "\n".join(self.lines) + "\n"

def wrap(body, grid, block, lds, vgpr, sgpr=100, accum=None, kname=KNAME, header=""):
    if accum is None:
        accum = (vgpr + 3) // 4 * 4
        accum = min(accum, 256)
    return f"""{header}; @launch grid=({grid},1,1) block=({block},1,1) lds={lds}
.amdgcn_target "amdgcn-amd-amdhsa--gfx950"
.text
.globl {kname}
.p2align 8
.type {kname},@function
{kname}:
{body}
.section .rodata,"a"
.p2align 6
.amdhsa_kernel {kname}
  .amdhsa_next_free_vgpr {vgpr}
  .amdhsa_next_free_sgpr {sgpr}
  .amdhsa_accum_offset {accum}
  .amdhsa_group_segment_fixed_size 0
  .amdhsa_kernarg_size 64
  .amdhsa_user_sgpr_count 2
  .amdhsa_user_sgpr_kernarg_segment_ptr 1
  .amdhsa_system_sgpr_workgroup_id_x 1
.end_amdhsa_kernel
"""
```

```python
import sys, math, struct
from asmlib import *
from build import build

L_K = 0x00000
L_V = 0x10000
L_W = 0x20000
L_Q = 0x24000
L_P = 0x24600
L_MX = 0x25000
L_FL = L_MX + 64
L_R = 0x25100
LDS_BYTES = 0x26100
W_EP = 0x000000
W_QP = 0x010000
W_ML = 0x040000
W_CL = 0x050000
W_OX = 0x060000
OXS = 2048 + 128
W_FX = 0x100000
FXS = 1024 + 128
WS_BYTES = 0x200000
SCALE = (128 ** -0.5) * math.log2(math.e)
EPC_LO = 0x9E3779B9
EPC_HI = 0x7F4A7C15
def f2u(f): return struct.unpack("<I", struct.pack("<f", f))[0]

class Cfg:
    stamps = False
    pol = "nt"
    wpol = "nt"
    rot = True
    early_bar = False
    maxout = None
    qsleep = 1
    osleep = 0
    fsleep = 0
    def __init__(self, **kw):
        for k, v in kw.items(): setattr(self, k, v)

def gen(cfg):
    a = Asm()
    S0 = 60
    def stamp(k):
        if cfg.stamps:
            a(f"s_memrealtime s[{S0+2*k}:{S0+1+2*k}]")
    def write_stamps(n):
        if not cfg.stamps: return
        a("s_waitcnt lgkmcnt(0)")
        a("s_lshl_b32 s56, s2, 4")
        a("s_add_u32 s56, s56, s20")
        a("s_lshl_b32 s56, s56, 8")
        a(f"s_add_u32 s56, s56, {STAMP_OFF}")
        a("s_add_u32 s56, s18, s56")
        a("s_addc_u32 s57, s19, 0")
        a("s_mov_b64 exec, 1")
        a("v_mov_b32 v2, 0")
        for k in range(n):
            a(f"v_mov_b32 v0, s{S0+2*k}")
            a(f"v_mov_b32 v1, s{S0+1+2*k}")
            a(f"global_store_dwordx2 v2, v[0:1], s[56:57] offset:{8*k}")
            a("s_nop 1")
    def ws_srd():
        a("s_mov_b32 s40, s18"); a("s_mov_b32 s41, s19"); a(f"s_mov_b32 s42, {WS_BYTES}"); a("s_mov_b32 s43, 0x20000")
    def epoch_load():
        a(f"s_load_dwordx2 s[50:51], s[18:19], {W_EP}")
    def epoch_fix():
        a(f"s_add_u32 s50, s50, {EPC_LO:#x}")
        a(f"s_addc_u32 s51, s51, {EPC_HI:#x}")

    stamp(0)
    a("s_cmp_ge_u32 s2, 256")
    a("s_cbranch_scc1 L_end")
    a("s_load_dwordx16 s[4:19], s[0:1], 0")
    a("v_lshrrev_b32 v1, 6, v0")
    a("v_and_b32 v0, 63, v0")
    a("s_and_b32 s21, s2, 7")
    a("v_readfirstlane_b32 s20, v1")
    a("s_lshr_b32 s22, s2, 3")
    a("s_lshr_b32 s23, s22, 4")
    a("s_and_b32 s24, s22, 15")
    a("s_lshl_b32 s44, s21, 5")
    a("s_add_u32 s44, s44, s22")
    a("v_and_b32 v1, 15, v0")
    a("v_lshrrev_b32 v2, 4, v0")
    a("s_cmp_eq_u32 s20, 1")
    a("s_cbranch_scc1 L_loader")
    a("s_cmp_ge_u32 s20, 2")
    a("s_cbranch_scc1 L_compute")

    a("s_setprio 3")
    a("v_lshlrev_b32 v3, 2, v0")
    a(f"v_add_u32 v3, {L_MX}, v3")
    a("v_cmp_gt_u32 vcc, 16, v0")
    a("s_lshl_b32 s27, s23, 9")
    a("s_nop 0")
    a("v_cndmask_b32_e64 v4, 0, -1, vcc")
    a("ds_write_b32 v3, v4")
    a("v_and_b32 v3, 1, v0")
    a("v_lshlrev_b32 v3, 10, v3")
    a("v_lshl_add_u32 v3, v2, 4, v3")
    a("v_add_u32 v3, s27, v3")
    a("v_and_b32 v4, 3, v0")
    a("v_lshrrev_b32 v5, 5, v0")
    a("v_lshlrev_b32 v5, 1, v5")
    a("v_xor_b32 v4, v4, v5")
    a("v_lshlrev_b32 v4, 4, v4")
    a("v_lshrrev_b32 v5, 2, v0")
    a("v_lshl_add_u32 v4, v5, 13, v4")
    a("s_lshl_b32 s27, s23, 21")
    a("s_lshl_b32 s3, s21, 10")
    a("s_add_u32 s27, s27, s3")
    a("s_lshl_b32 s3, s24, 6")
    a("s_add_u32 s27, s27, s3")
    a("s_waitcnt lgkmcnt(0)")
    if cfg.early_bar: a("s_barrier")
    stamp(1)
    a("s_add_u32 s28, s10, s27"); a("s_addc_u32 s29, s11, 0"); a(f"s_sub_u32 s30, {512*8192}, s27"); a("s_mov_b32 s31, 0x20000")
    for i in range(16):
        a(f"s_mov_b32 m0, {L_W + i*1024}")
        a(f"s_mov_b32 s3, {i*16*8192}")
        a(f"buffer_load_dwordx4 v4, s[28:31], s3 offen {cfg.wpol} lds")
        if i == 1:
            for st in range(8):
                a(f"global_load_dwordx4 v[{8+4*st}:{11+4*st}], v3, s[4:5] offset:{st*64}")
    if not cfg.early_bar: a("s_barrier")
    epoch_load()
    stamp(2)
    ws_srd()
    a("v_lshrrev_b32 v6, 2, v1")
    a("v_lshl_add_u32 v6, v2, 3, v6")
    a("v_lshlrev_b32 v6, 6, v6")
    a("v_and_b32 v7, 3, v0")
    a("v_lshl_add_u32 v6, v7, 3, v6")
    a("v_and_b32 v7, 1, v2")
    a("v_lshl_add_u32 v6, v7, 5, v6")
    a(f"v_add_u32 v5, {L_W}, v6")
    a("v_xor_b32 v6, 32, v5")
    a("s_waitcnt lgkmcnt(0)")
    epoch_fix()
    def q_reads(p):
        a(f"s_waitcnt vmcnt({16 - 4*(p+1)}) lgkmcnt(7)")
        for sst in range(2):
            st = 2*p + sst
            for nt in range(2):
                base = 40 + (p & 1)*16 + sst*8 + nt*4
                a(f"ds_read_b64_tr_b16 v[{base}:{base+1}], v{5+nt} offset:{st*2048}")
                a(f"ds_read_b64_tr_b16 v[{base+2}:{base+3}], v{5+nt} offset:{st*2048+256}")
    def q_mfma(p):
        for sst in range(2):
            st = 2*p + sst
            for nt in range(2):
                base = 40 + (p & 1)*16 + sst*8 + nt*4
                c = "0" if st == 0 else f"v[{72+4*nt}:{75+4*nt}]"
                a(f"v_mfma_f32_16x16x32_bf16 v[{72+4*nt}:{75+4*nt}], v[{8+4*st}:{11+4*st}], v[{base}:{base+3}], {c}")
    q_reads(0)
    stamp(3)
    q_reads(1)
    a("s_waitcnt lgkmcnt(8)" if not cfg.stamps else "s_waitcnt lgkmcnt(0)")
    q_mfma(0)
    q_reads(2)
    a("s_waitcnt lgkmcnt(8)")
    q_mfma(1)
    q_reads(3)
    a("s_waitcnt lgkmcnt(8)")
    q_mfma(2)
    a("s_waitcnt lgkmcnt(0)")
    q_mfma(3)
    a(f"v_mov_b32 v6, {L_FL}")
    a("v_mov_b32 v7, 1")
    a("ds_write_b32 v6, v7 offset:12")
    a("s_lshl_b32 s3, s21, 14")
    a("s_lshl_b32 s45, s23, 12")
    a("s_add_u32 s3, s3, s45")
    a("s_lshl_b32 s45, s24, 8")
    a("s_add_u32 s3, s3, s45")
    a(f"s_add_u32 s3, s3, {W_QP}")
    a("v_and_b32 v3, 31, v0")
    a("v_lshlrev_b32 v3, 3, v3")
    a("v_lshrrev_b32 v4, 5, v0")
    a("v_lshl_add_u32 v3, v4, 13, v3")
    a("s_and_b32 s52, s51, 0xff")
    a("s_mov_b32 s53, 0xffffff00")
    a("v_mov_b32_dpp v72, v76 quad_perm:[0,1,2,3] row_mask:0x2 bank_mask:0xf")
    a("v_mov_b32_dpp v72, v73 quad_perm:[0,1,2,3] row_mask:0x4 bank_mask:0xf")
    a("v_mov_b32_dpp v72, v77 quad_perm:[0,1,2,3] row_mask:0x8 bank_mask:0xf")
    a("v_mov_b32 v73, s50")
    a("v_add_u32 v72, 0x80, v72")
    a("v_and_b32 v72, s53, v72")
    a("v_or_b32 v72, s52, v72")
    a("buffer_store_dwordx2 v[72:73], v3, s[40:43], s3 offen sc1")
    stamp(4)
    a("s_lshl_b32 s3, s21, 14")
    a("s_lshl_b32 s45, s23, 13")
    a("s_add_u32 s3, s3, s45")
    a(f"s_add_u32 s3, s3, {W_QP}")
    a("s_add_u32 s45, s3, 4096")
    a("v_lshlrev_b32 v4, 4, v0")
    a("v_lshlrev_b32 v5, 2, v0")
    a(f"v_add_u32 v5, {L_Q}, v5")
    a("s_mov_b32 s47, 0x20000")
    a.label("L_qpoll")
    for k in range(8):
        so = "s3" if k < 4 else "s45"
        a(f"buffer_load_dwordx4 v[{8+4*k}:{11+4*k}], v4, s[40:43], {so} offen offset:{(k&3)*1024} sc1")
    a("s_sub_u32 s47, s47, 1")
    a("s_cbranch_scc1 L_qpoll_done")
    for k in range(8):
        a(f"s_waitcnt vmcnt({7-k})")
        b0 = 8+4*k
        if k == 0:
            a(f"v_or_b32 v40, v{b0}, v{b0+2}"); a(f"v_and_b32 v41, v{b0}, v{b0+2}")
            a(f"v_or_b32 v42, v{b0+1}, v{b0+3}"); a(f"v_and_b32 v43, v{b0+1}, v{b0+3}")
        else:
            a(f"v_or3_b32 v40, v40, v{b0}, v{b0+2}"); a(f"v_bitop3_b32 v41, v41, v{b0}, v{b0+2} bitop3:0x80")
            a(f"v_or3_b32 v42, v42, v{b0+1}, v{b0+3}"); a(f"v_bitop3_b32 v43, v43, v{b0+1}, v{b0+3} bitop3:0x80")
    a("v_xor_b32 v40, s52, v40"); a("v_xor_b32 v41, s52, v41")
    a("v_xor_b32 v42, s50, v42"); a("v_xor_b32 v43, s50, v43")
    a("v_or_b32 v40, v40, v41")
    a("v_and_b32 v40, 0xff, v40")
    a("v_or3_b32 v40, v40, v42, v43")
    a("v_cmp_ne_u32 vcc, 0, v40")
    if cfg.qsleep: a(f"s_sleep {cfg.qsleep}")
    a("s_cbranch_vccnz L_qpoll")
    a.label("L_qpoll_done")
    a("s_waitcnt vmcnt(0)")
    stamp(5)
    for h in range(4):
        for e in range(2):
            x0 = 8 + 4*h + 2*e; x1 = x0 + 16
            a(f"v_and_b32 v{x0}, s53, v{x0}")
            a(f"v_and_b32 v{x1}, s53, v{x1}")
            a(f"v_add_f32 v{x0}, v{x0}, v{x1}")
        a(f"v_cvt_pk_bf16_f32 v{8+4*h}, v{8+4*h}, v{10+4*h}")
        a(f"ds_write_b32 v5, v{8+4*h} offset:{h*320}")
    a("s_waitcnt lgkmcnt(0)")
    a("ds_write_b32 v6, v7")
    stamp(6)
    a("s_lshl_b32 s3, s21, 12")
    a(f"s_add_u32 s3, s3, {W_CL}")
    a("v_and_b32 v4, 31, v0")
    a("v_lshlrev_b32 v4, 7, v4")
    a.label("L_clpoll")
    a("buffer_load_dwordx2 v[8:9], v4, s[40:43], s3 offen sc1")
    a("s_sub_u32 s47, s47, 1")
    a("s_cbranch_scc1 L_clpoll_done")
    a("s_waitcnt vmcnt(0)")
    a("v_cmp_ne_u64 vcc, s[50:51], v[8:9]")
    a("s_sleep 2")
    a("s_cbranch_vccnz L_clpoll")
    a.label("L_clpoll_done")
    stamp(7)
    write_stamps(8)
    a("s_endpgm")

    a.label("L_loader")
    a("v_xor_b32 v3, v1, v2")
    a("v_lshlrev_b32 v3, 4, v3")
    a("v_lshl_add_u32 v4, v2, 8, v3")
    for i in range(1, 4): a(f"v_xor_b32 v{4+i}, {i*64}, v4")
    a("v_lshlrev_b32 v3, 1, v2")
    a("v_xor_b32 v3, v1, v3")
    a("v_lshlrev_b32 v3, 4, v3")
    a("v_lshl_add_u32 v8, v2, 8, v3")
    a("v_xor_b32 v9, 0x80, v8")
    a("v_lshlrev_b32 v10, 10, v2")
    a("v_lshl_add_u32 v10, v1, 4, v10")
    a(f"v_mov_b32 v11, {L_FL}")
    a("v_mov_b32 v12, 1")
    a("s_lshl_b32 s25, s23, 3")
    a("s_add_u32 s25, s25, s21")
    a("s_lshl_b32 s25, s25, 23")
    a("s_lshl_b32 s26, s24, 16")
    a("s_add_u32 s25, s25, s26")
    a(f"s_add_u32 s25, s25, {28672*256}")
    a("s_lshl_b32 s26, s21, 19")
    a("s_lshr_b32 s27, s22, 2")
    a("s_lshl_b32 s27, s27, 16")
    a("s_add_u32 s26, s26, s27")
    a("s_and_b32 s27, s22, 3")
    a("s_lshl_b32 s27, s27, 8")
    a("s_add_u32 s26, s26, s27")
    if cfg.rot:
        a("s_lshl_b32 s45, s24, 12")
    else:
        a("s_mov_b32 s45, 0")
    a("s_waitcnt lgkmcnt(0)")
    epoch_load()
    a("s_add_u32 s28, s6, s25"); a("s_addc_u32 s29, s7, 0"); a("s_mov_b32 s30, 0x10000"); a("s_mov_b32 s31, 0x20000")
    a("s_add_u32 s32, s8, s25"); a("s_addc_u32 s33, s9, 0"); a("s_mov_b32 s34, 0x10000"); a("s_mov_b32 s35, 0x20000")
    a("s_add_u32 s36, s12, s26"); a("s_addc_u32 s37, s13, 0"); a(f"s_sub_u32 s38, {4096*1024}, s26"); a("s_mov_b32 s39, 0x20000")
    ws_srd()
    a(f"s_mov_b32 m0, {L_K}")
    a("s_barrier")
    stamp(1)
    def sloop(name, end, srd, vf):
        a.label(name)
        if cfg.maxout: a(f"s_waitcnt vmcnt({cfg.maxout-4})")
        for i in range(4):
            a(f"buffer_load_dwordx4 v{vf(i)}, {srd}, s45 offen offset:{i*1024} {cfg.pol} lds")
        a("s_add_u32 s45, s45, 4096")
        a("s_and_b32 s45, s45, 0xffff")
        a("s_add_u32 m0, m0, 4096")
        a(f"s_cmp_lt_u32 m0, {end}")
        a(f"s_cbranch_scc1 {name}")
    sloop("L_kloop", L_V, "s[28:31]", lambda i: 4+i)
    stamp(2)
    kw = min(32, cfg.maxout or 32)
    sloop("L_vloop1", L_V + kw*1024, "s[32:35]", lambda i: 8+(i>>1))
    a(f"s_waitcnt vmcnt({kw})")
    a("ds_write_b32 v11, v12 offset:4")
    stamp(3)
    sloop("L_vloop2", L_V + 65536, "s[32:35]", lambda i: 8+(i>>1))
    a("s_mov_b32 s47, 0x100000")
    a.label("L_wqc")
    a("ds_read_b32 v13, v11 offset:12")
    a("s_sub_u32 s47, s47, 1")
    a("s_cbranch_scc1 L_wqc_done")
    a("s_waitcnt lgkmcnt(0)")
    a("v_cmp_eq_u32 vcc, 0, v13")
    a("s_cbranch_vccnz L_wqc")
    a.label("L_wqc_done")
    a("s_waitcnt lgkmcnt(0)")
    epoch_fix()
    for i in range(16):
        if cfg.maxout and i % 4 == 0: a(f"s_waitcnt vmcnt({cfg.maxout-4})")
        a(f"s_mov_b32 m0, {L_W + i*1024}")
        a(f"s_mov_b32 s3, {i*4096}")
        a(f"buffer_load_dwordx4 v10, s[36:39], s3 offen {cfg.wpol} lds")
    stamp(4)
    a("s_lshl_b32 s25, s21, 2")
    a("s_lshr_b32 s26, s22, 3")
    a("s_add_u32 s25, s25, s26")
    a("s_lshr_b32 s26, s25, 3")
    a("s_and_b32 s27, s25, 7")
    a("s_and_b32 s46, s22, 7")
    a("v_lshlrev_b32 v13, 9, v0")
    a("s_lshl_b32 s48, s26, 7")
    a(f"s_add_u32 s48, s48, {W_CL}")
    a(f"v_mul_u32_u24 v14, {FXS}, v0")
    a(f"s_mul_i32 s3, s26, {64*FXS}")
    a("s_lshl_b32 s49, s27, 7")
    a("s_add_u32 s3, s3, s49")
    a("s_lshl_b32 s49, s46, 4")
    a("s_add_u32 s3, s3, s49")
    a(f"s_add_u32 s3, s3, {W_FX}")
    a("s_lshr_b32 s49, s27, 2")
    a("s_lshl_b32 s49, s49, 10")
    a("s_lshl_b32 s26, s26, 8")
    a("s_add_u32 s49, s49, s26")
    a("s_and_b32 s27, s27, 3")
    a("s_lshl_b32 s27, s27, 6")
    a("s_add_u32 s49, s49, s27")
    a("s_lshl_b32 s46, s46, 3")
    a("s_add_u32 s49, s49, s46")
    a("v_and_b32 v3, 1, v2")
    a("v_lshlrev_b32 v3, 2, v3")
    a("v_lshrrev_b32 v4, 1, v2")
    a("v_lshl_add_u32 v3, v4, 1, v3")
    a("v_add_u32 v3, s49, v3")
    for k, n in enumerate((40, 32, 24, 16, 0)):
        a(f"s_waitcnt vmcnt({n})")
        if n == 16: stamp(5)
        if n == 0: stamp(6)
        a("s_barrier")
    a("s_mov_b32 s47, 0x20000")
    a.label("L_cl2")
    a("buffer_load_dwordx2 v[16:17], v13, s[40:43], s48 offen sc1")
    a("s_sub_u32 s47, s47, 1")
    a("s_cbranch_scc1 L_cl2_done")
    a("s_waitcnt vmcnt(0)")
    a("v_cmp_ne_u64 vcc, s[50:51], v[16:17]")
    a("s_cbranch_vccnz L_cl2")
    a.label("L_cl2_done")
    a("s_barrier")
    a.label("L_fpoll")
    a("buffer_load_dwordx4 v[16:19], v14, s[40:43], s3 offen sc1")
    a("s_sub_u32 s47, s47, 1")
    a("s_cbranch_scc1 L_fpoll_done")
    a("s_waitcnt vmcnt(0)")
    a("v_max3_u32 v13, v16, v17, v18")
    a("v_max_u32 v13, v13, v19")
    a("v_cmp_eq_u32 vcc, -1, v13")
    if cfg.fsleep: a(f"s_sleep {cfg.fsleep}")
    a("s_cbranch_vccnz L_fpoll")
    a.label("L_fpoll_done")
    a("s_waitcnt vmcnt(0)")
    stamp(7)
    a("v_permlane32_swap_b32 v16, v17")
    a("v_permlane32_swap_b32 v18, v19")
    a("s_nop 1")
    a("v_add_f32 v16, v16, v17")
    a("v_add_f32 v18, v18, v19")
    a("s_nop 1")
    a("v_permlane16_swap_b32 v16, v18")
    a("s_nop 1")
    a("v_add_f32 v16, v16, v18")
    for ctl in ("quad_perm:[1,0,3,2]", "quad_perm:[2,3,0,1]", "row_half_mirror", "row_mirror"):
        a("s_nop 1")
        a(f"v_add_f32_dpp v16, v16, v16 {ctl} row_mask:0xf bank_mask:0xf")
    a("s_mov_b32 exec_lo, 0x00010001")
    a("v_cvt_pk_bf16_f32 v16, v16, v16")
    a("s_mov_b32 exec_hi, 0x00010001")
    a("global_store_short v3, v16, s[14:15]")
    a("s_cmp_lg_u32 s2, 0")
    a("s_cbranch_scc1 L_noep")
    a("s_mov_b64 exec, 1")
    a("v_mov_b32 v4, s50")
    a("v_mov_b32 v5, s51")
    a(f"v_mov_b32 v3, {W_EP}")
    a("global_store_dwordx2 v3, v[4:5], s[18:19]")
    a.label("L_noep")
    stamp(8)
    write_stamps(9)
    a("s_endpgm")

    a.label("L_compute")
    a("s_sub_u32 s25, s20, 2")
    a("v_xor_b32 v3, v1, v2")
    a("v_lshlrev_b32 v3, 4, v3")
    a("v_lshl_add_u32 v4, v1, 8, v3")
    a("s_lshl_b32 s3, s25, 14")
    a("v_add_u32 v4, s3, v4")
    for st in range(1, 4): a(f"v_xor_b32 v{4+st}, {st*64}, v4")
    a("v_and_b32 v3, 3, v0")
    a("v_mul_u32_u24 v8, 320, v3")
    a("v_lshl_add_u32 v8, v2, 4, v8")
    a(f"v_add_u32 v8, {L_Q}, v8")
    a("v_lshlrev_b32 v10, 4, v3")
    a(f"v_add_u32 v10, {L_MX}, v10")
    a("s_lshl_b32 s3, s25, 2")
    a("v_add_u32 v9, s3, v10")
    a("v_mul_u32_u24 v11, 576, v3")
    a("v_lshrrev_b32 v12, 2, v1")
    a("v_lshl_add_u32 v11, v12, 5, v11")
    a("v_lshl_add_u32 v11, v2, 3, v11")
    a("s_lshl_b32 s3, s25, 7")
    a(f"s_add_u32 s3, s3, {L_P}")
    a("v_add_u32 v11, s3, v11")
    a("v_mul_u32_u24 v12, 576, v12")
    a("v_lshl_add_u32 v12, v2, 4, v12")
    a(f"v_add_u32 v12, {L_P}, v12")
    a(f"v_mov_b32 v15, {L_FL}")
    a("s_waitcnt lgkmcnt(0)")
    ws_srd()
    a("s_barrier")
    stamp(1)
    a(f"s_mul_i32 s28, s44, {OXS}")
    a(f"s_add_u32 s28, s28, {W_OX}")
    a("s_and_b32 s31, s22, 3")
    a(f"s_mul_i32 s31, s31, {64*FXS}")
    a("s_lshr_b32 s27, s44, 2")
    a(f"s_mul_i32 s27, s27, {FXS}")
    a("s_add_u32 s31, s31, s27")
    a(f"s_add_u32 s31, s31, {W_FX}")
    a("s_lshl_b32 s32, s44, 7")
    a("s_cmp_lg_u32 s25, 3")
    a("s_cbranch_scc1 L_noclear")
    epoch_load()
    a("v_mov_b32 v24, -1"); a("v_mov_b32 v25, -1"); a("v_mov_b32 v26, -1"); a("v_mov_b32 v27, -1")
    a("v_lshlrev_b32 v20, 4, v0")
    a("buffer_store_dwordx4 v[24:27], v20, s[40:43], s28 offen sc1")
    a("buffer_store_dwordx4 v[24:27], v20, s[40:43], s28 offen offset:1024 sc1")
    a("buffer_store_dwordx4 v[24:27], v20, s[40:43], s31 offen sc1")
    a(f"s_add_u32 s3, s32, {W_ML}")
    a("s_mov_b64 exec, 0xff")
    a("buffer_store_dwordx4 v[24:27], v20, s[40:43], s3 offen sc1")
    a("s_mov_b64 exec, 1")
    a("s_waitcnt lgkmcnt(0)")
    epoch_fix()
    a(f"s_add_u32 s3, s32, {W_CL}")
    a("v_mov_b32 v22, s50")
    a("v_mov_b32 v23, s51")
    a("v_mov_b32 v21, 1")
    a("s_waitcnt vmcnt(0)")
    a("buffer_store_dwordx2 v[22:23], v20, s[40:43], s3 offen sc1")
    a("ds_write_b32 v15, v21 offset:8")
    a("s_mov_b64 exec, -1")
    a.label("L_noclear")
    a("v_lshrrev_b32 v13, 2, v1")
    a("v_and_b32 v14, 1, v2")
    a("v_lshl_or_b32 v14, v14, 2, v13")
    a("v_lshlrev_b32 v14, 1, v14")
    a("v_bfe_u32 v20, v0, 1, 1")
    a("s_lshl_b32 s3, s25, 2")
    a("v_or_b32 v20, s3, v20")
    a("v_xor_b32 v14, v14, v20")
    a("v_lshl_add_u32 v13, v2, 3, v13")
    a("v_lshlrev_b32 v13, 8, v13")
    a("v_lshl_add_u32 v13, v14, 4, v13")
    a("v_and_b32 v14, 1, v0")
    a("v_lshl_add_u32 v13, v14, 3, v13")
    a(f"v_add_u32 v13, {L_V}, v13")
    a("v_xor_b32 v14, 32, v13")
    a("v_and_b32 v20, 1, v0")
    a("v_cmp_eq_u32 vcc, 1, v20")
    a("v_mov_b32 v21, 0xffff")
    a("v_mov_b32 v22, 0xffff0000")
    a("v_cndmask_b32 v21, v21, v22, vcc")
    a("v_bfe_u32 v20, v0, 1, 2")
    for q in range(4):
        a(f"v_cmp_eq_u32 vcc, {q}, v20")
        a("s_nop 1")
        a(f"v_cndmask_b32 v{16+q}, 0, v21, vcc")
    a("v_lshlrev_b32 v23, 9, v2")
    a("v_lshl_add_u32 v23, v1, 3, v23")
    a("s_lshl_b32 s27, s25, 7")
    a("s_add_u32 s28, s28, s27")
    a("v_and_b32 v24, 7, v0")
    a("v_bfe_u32 v25, v0, 3, 1")
    a("v_lshl_add_u32 v25, v25, 4, v24")
    a(f"v_mul_u32_u24 v24, {OXS}, v25")
    a("v_lshl_add_u32 v24, v2, 4, v24")
    a(f"s_mul_i32 s29, s21, {32*OXS}")
    a("s_lshr_b32 s27, s22, 2")
    a("s_lshl_b32 s27, s27, 8")
    a("s_add_u32 s29, s29, s27")
    a("s_lshl_b32 s27, s25, 6")
    a("s_add_u32 s29, s29, s27")
    a(f"s_add_u32 s29, s29, {W_OX}")
    a(f"s_add_u32 s33, s29, {8*OXS}")
    a("v_lshlrev_b32 v25, 7, v25")
    a("v_lshl_add_u32 v25, v2, 3, v25")
    a("s_lshl_b32 s30, s21, 12")
    a("s_lshr_b32 s27, s22, 3")
    a("s_lshl_b32 s27, s27, 5")
    a("s_add_u32 s30, s30, s27")
    a(f"s_add_u32 s30, s30, {W_ML}")
    a("v_lshrrev_b32 v26, 5, v0")
    a("v_lshlrev_b32 v26, 9, v26")
    a("v_lshl_add_u32 v26, v1, 5, v26")
    a("v_and_b32 v27, 1, v2")
    a("v_lshl_add_u32 v26, v27, 4, v26")
    a("s_lshl_b32 s27, s25, 10")
    a(f"s_add_u32 s27, s27, {L_R}")
    a("v_add_u32 v26, s27, v26")
    a("v_lshlrev_b32 v29, 2, v0")
    a("s_lshl_b32 s27, s25, 8")
    a("s_add_u32 s31, s31, s27")
    a(f"s_add_u32 s27, s27, {L_R}")
    a("v_add_u32 v28, s27, v29")
    a("v_lshlrev_b32 v27, 9, v2")
    a("v_lshl_add_u32 v27, v1, 4, v27")
    a("s_lshr_b32 s27, s25, 1")
    a("s_lshl_b32 s27, s27, 13")
    a("s_and_b32 s3, s25, 1")
    a("s_lshl_b32 s3, s3, 11")
    a("s_add_u32 s27, s27, s3")
    a(f"s_add_u32 s27, s27, {L_W}")
    a("v_add_u32 v27, s27, v27")
    a("s_mov_b32 s47, 0x100000")
    a.label("L_kw")
    a("ds_read_b32 v20, v15 offset:4")
    a("s_sub_u32 s47, s47, 1")
    a("s_cbranch_scc1 L_kw_done")
    a("s_waitcnt lgkmcnt(0)")
    a("v_cmp_eq_u32 vcc, 0, v20")
    a("s_sleep 1")
    a("s_cbranch_vccnz L_kw")
    a.label("L_kw_done")
    stamp(2)
    for t in range(4):
        for st in range(4):
            base = 32 + (t*4+st)*4
            a(f"ds_read_b128 v[{base}:{base+3}], v{4+st} offset:{t*4096}")
        if t == 1: a("s_waitcnt lgkmcnt(4)")
    a.label("L_qw")
    a("ds_read2_b32 v[20:21], v15 offset0:0 offset1:2")
    a("s_sub_u32 s47, s47, 1")
    a("s_cbranch_scc1 L_qw_done")
    a("s_waitcnt lgkmcnt(0)")
    a("v_and_b32 v20, v20, v21")
    a("v_cmp_eq_u32 vcc, 0, v20")
    a("s_sleep 1")
    a("s_cbranch_vccnz L_qw")
    a.label("L_qw_done")
    stamp(3)
    for st in range(4):
        a(f"ds_read_b128 v[{96+4*st}:{99+4*st}], v8 offset:{st*64}")
    a("s_waitcnt lgkmcnt(0)")
    for st in range(4):
        for t in range(4):
            base = 32 + (t*4+st)*4
            c = "0" if st == 0 else f"v[{112+4*t}:{115+4*t}]"
            a(f"v_mfma_f32_16x16x32_bf16 v[{112+4*t}:{115+4*t}], v[{base}:{base+3}], v[{96+4*st}:{99+4*st}], {c}")
    a("s_nop 7")
    for t in range(1, 4):
        for r in range(4):
            a(f"v_mov_b32_dpp v{112+r}, v{112+4*t+r} quad_perm:[0,1,2,3] row_mask:0xf bank_mask:{1<<t:#x}")
    a("v_max3_f32 v20, v112, v113, v114")
    a("v_max_f32 v20, v20, v115")
    def allred(op, v, t):
        for ctl in ("row_ror:4", "row_ror:8"):
            a("s_nop 1")
            a(f"{op}_dpp {v}, {v}, {v} {ctl} row_mask:0xf bank_mask:0xf")
        for sw in ("v_permlane16_swap_b32", "v_permlane32_swap_b32"):
            a(f"v_mov_b32 {t}, {v}")
            a("s_nop 1")
            a(f"{sw} {t}, {v}")
            a("s_nop 1")
            a(f"{op} {v}, {v}, {t}")
    allred("v_max_f32", "v20", "v21")
    a("v_min_u32 v20, -2, v20")
    a("ds_write_b32 v9, v20")
    a.label("L_mw")
    a("ds_read_b128 v[96:99], v10")
    a("s_sub_u32 s47, s47, 1")
    a("s_cbranch_scc1 L_mw_done")
    a("s_waitcnt lgkmcnt(0)")
    a("v_max3_u32 v20, v96, v97, v98")
    a("v_max_u32 v20, v20, v99")
    a("v_cmp_eq_u32 vcc, -1, v20")
    a("s_cbranch_vccnz L_mw")
    a.label("L_mw_done")
    a("s_waitcnt lgkmcnt(0)")
    a(f"s_mov_b32 s26, {f2u(SCALE):#x}")
    a("v_max3_f32 v20, v96, v97, v98")
    a("v_max_f32 v20, v20, v99")
    a("v_mul_f32 v20, s26, v20")
    for r in range(4): a(f"v_fma_f32 v{112+r}, v{112+r}, s26, -v20")
    for r in range(4): a(f"v_exp_f32 v{112+r}, v{112+r}")
    a("s_nop 0")
    a("v_cvt_pk_bf16_f32 v96, v112, v113")
    a("v_cvt_pk_bf16_f32 v97, v114, v115")
    a("ds_write_b64 v11, v[96:97]")
    a("v_add_f32 v21, v112, v113")
    a("v_add_f32 v22, v114, v115")
    a("v_add_f32 v21, v21, v22")
    allred("v_add_f32", "v21", "v22")
    a("v_min_u32 v20, -2, v20")
    a("v_min_u32 v21, -2, v21")
    a("s_lshl_b32 s27, s25, 3")
    a("s_add_u32 s3, s32, s27")
    a(f"s_add_u32 s3, s3, {W_ML}")
    a("v_lshlrev_b32 v22, 5, v0")
    a("s_mov_b64 exec, 0xf")
    a("buffer_store_dwordx2 v[20:21], v22, s[40:43], s3 offen sc1")
    a("s_mov_b64 exec, -1")
    stamp(4)
    a("s_waitcnt lgkmcnt(0)")
    a("s_barrier")
    stamp(5)
    for u in range(8):
        a(f"ds_read_b128 v[{32+4*u}:{35+4*u}], v12 offset:{u*64}")
    def v_reads(u, slot):
        for e in range(2):
            base = 64 + slot*8 + e*4
            a(f"ds_read_b64_tr_b16 v[{base}:{base+1}], v{13+e} offset:{u*8192}")
            a(f"ds_read_b64_tr_b16 v[{base+2}:{base+3}], v{13+e} offset:{u*8192+1024}")
    def v_mfma(u, slot):
        for e in range(2):
            base = 64 + slot*8 + e*4
            c = "0" if u == 0 else f"v[{112+4*e}:{115+4*e}]"
            a(f"v_mfma_f32_16x16x32_bf16 v[{112+4*e}:{115+4*e}], v[{32+4*u}:{35+4*u}], v[{base}:{base+3}], {c}")
    v_reads(0, 0)
    a("s_waitcnt lgkmcnt(4)")
    v_reads(1, 1); v_reads(2, 2)
    a("s_waitcnt lgkmcnt(8)"); v_mfma(0, 0)
    v_reads(3, 3)
    a("s_waitcnt lgkmcnt(8)"); v_mfma(1, 1)
    v_reads(4, 4)
    a("s_waitcnt lgkmcnt(8)"); v_mfma(2, 2)
    a("s_waitcnt lgkmcnt(4)"); v_mfma(3, 3)
    a("s_waitcnt lgkmcnt(0)"); v_mfma(4, 4)
    for u in (5, 6, 7):
        if u == 7:
            a("buffer_load_dwordx2 v[96:97], v25, s[40:43], s30 offen sc1")
            a("buffer_load_dwordx2 v[98:99], v25, s[40:43], s30 offen offset:1024 sc1")
        a("s_barrier")
        if u == 7: stamp(6)
        v_reads(u, u - 5)
        a("s_waitcnt lgkmcnt(0)"); v_mfma(u, u - 5)
    a("s_nop 7")
    a("v_min_u32 v112, -2, v112")
    a("v_min_u32 v113, -2, v116")
    a("buffer_store_dwordx2 v[112:113], v23, s[40:43], s28 offen sc1")
    stamp(7)
    a("s_mov_b32 s47, 0x20000")
    a("s_waitcnt vmcnt(1)")
    a("s_branch L_mlchk")
    a.label("L_mlpoll")
    a("buffer_load_dwordx2 v[96:97], v25, s[40:43], s30 offen sc1")
    a("buffer_load_dwordx2 v[98:99], v25, s[40:43], s30 offen offset:1024 sc1")
    a("s_sub_u32 s47, s47, 1")
    a("s_cbranch_scc1 L_ml_done")
    a("s_waitcnt vmcnt(0)")
    a.label("L_mlchk")
    a("v_max3_u32 v101, v96, v97, v98")
    a("v_max_u32 v101, v101, v99")
    a("v_cmp_eq_u32 vcc, -1, v101")
    a("s_cbranch_vccnz L_mlpoll")
    a.label("L_ml_done")
    a("buffer_load_dwordx4 v[64:67], v24, s[40:43], s29 offen sc1")
    a("buffer_load_dwordx4 v[68:71], v24, s[40:43], s33 offen sc1")
    a("v_max_f32 v101, v96, v98")
    for ctl in ("quad_perm:[1,0,3,2]", "quad_perm:[2,3,0,1]", "row_half_mirror"):
        a("s_nop 1")
        a(f"v_max_f32_dpp v101, v101, v101 {ctl} row_mask:0xf bank_mask:0xf")
    a("v_sub_f32 v96, v96, v101")
    a("v_sub_f32 v98, v98, v101")
    a("v_exp_f32 v96, v96")
    a("v_exp_f32 v98, v98")
    a("s_nop 0")
    a("v_mul_f32 v101, v96, v97")
    a("v_fmac_f32 v101, v98, v99")
    for ctl in ("quad_perm:[1,0,3,2]", "quad_perm:[2,3,0,1]", "row_half_mirror"):
        a("s_nop 1")
        a(f"v_add_f32_dpp v101, v101, v101 {ctl} row_mask:0xf bank_mask:0xf")
    for sw in ("v_permlane16_swap_b32", "v_permlane32_swap_b32"):
        a("v_mov_b32 v102, v101")
        a("s_nop 1")
        a(f"{sw} v102, v101")
        a("s_nop 1")
        a("v_add_f32 v101, v101, v102")
    a("v_rcp_f32 v101, v101")
    a("s_nop 0")
    a("v_mul_f32 v96, v96, v101")
    a("v_mul_f32 v98, v98, v101")
    a("s_barrier")
    for t in range(4):
        a(f"ds_read_b128 v[{80+4*t}:{83+4*t}], v27 offset:{((t&1)*16 + (t>>1))*256}")
    a("s_waitcnt vmcnt(0)")
    a("s_branch L_oxchk")
    a.label("L_oxpoll")
    a("buffer_load_dwordx4 v[64:67], v24, s[40:43], s29 offen sc1")
    a("buffer_load_dwordx4 v[68:71], v24, s[40:43], s33 offen sc1")
    a("s_sub_u32 s47, s47, 1")
    a("s_cbranch_scc1 L_ox_done")
    a("s_waitcnt vmcnt(0)")
    a.label("L_oxchk")
    a("v_max3_u32 v101, v64, v65, v66")
    a("v_max3_u32 v102, v67, v68, v69")
    a("v_max3_u32 v101, v101, v70, v71")
    a("v_max_u32 v101, v101, v102")
    a("v_cmp_eq_u32 vcc, -1, v101")
    if cfg.osleep: a(f"s_sleep {cfg.osleep}")
    a("s_cbranch_vccnz L_oxpoll")
    a.label("L_ox_done")
    a("s_waitcnt vmcnt(0)")
    stamp(8)
    for k in range(4): a(f"v_mul_f32 v{64+k}, v{64+k}, v96")
    for k in range(4): a(f"v_fmac_f32 v{64+k}, v{68+k}, v98")
    for ctl in ("quad_perm:[1,0,3,2]", "quad_perm:[2,3,0,1]", "row_half_mirror"):
        for k in range(4):
            a(f"v_add_f32_dpp v{64+k}, v{64+k}, v{64+k} {ctl} row_mask:0xf bank_mask:0xf")
    for k in range(4): a(f"v_cvt_pk_bf16_f32 v{64+k}, v{64+k}, v{64+k}")
    for t in range(4):
        for q in range(4):
            a(f"v_and_b32 v{32+4*t+q}, v{64+t}, v{16+q}")
    a("s_waitcnt lgkmcnt(0)")
    for t in range(4):
        c = "0" if t == 0 else "v[112:115]"
        a(f"v_mfma_f32_16x16x32_bf16 v[112:115], v[{32+4*t}:{35+4*t}], v[{80+4*t}:{83+4*t}], {c}")
    a("s_nop 7")
    a("ds_write_b128 v26, v[112:115]")
    a("s_waitcnt lgkmcnt(0)")
    a("s_barrier")
    a("ds_read2st64_b32 v[64:65], v28 offset0:0 offset1:4")
    a("ds_read2st64_b32 v[66:67], v28 offset0:8 offset1:12")
    a("s_waitcnt lgkmcnt(1)")
    a("v_add_f32 v64, v64, v65")
    a("s_waitcnt lgkmcnt(0)")
    a("v_add_f32 v66, v66, v67")
    a("v_add_f32 v64, v64, v66")
    a("v_min_u32 v64, -2, v64")
    a("buffer_store_dword v64, v29, s[40:43], s31 offen sc1")
    stamp(9)
    write_stamps(10)
    a.label("L_end")
    a("s_endpgm")
    return wrap(a.text(), 256, 384, LDS_BYTES, 128)

if __name__ == "__main__":
    open("k2.s", "w").write(gen(Cfg()))
    build("k2.s")
    open("k2s.s", "w").write(gen(Cfg(stamps=True)))
    build("k2s.s")
    print(LDS_BYTES)
```

```python
import sys
from gen2 import *
V = {}
for m in (12, 16, 20, 24, 32):
    V[f"m{m}"] = dict(maxout=m)
cmds = []; names = []
for name, kw in V.items():
    for st in (False, True):
        n = f"k2_{name}" + ("s" if st else "")
        open(n + ".s", "w").write(gen(Cfg(stamps=st, **kw)))
        build(n + ".s")
        names.append(n)
        cmds.append(f"echo == {n}; timeout 120 ./bench {n}.co -k {KNAME} 256 384 {LDS_BYTES} -n 15 -pre 2 " + ("-s 10 -w 3" if st else "") + " | grep -v dbg")
open("run_mb.sh", "w").write("\n".join(cmds) + "\n")
print(" ".join(f'"work/{n}.co"' + "," for n in names))
```

```python
import sys, math, struct
from asmlib import *
from build import build

L_K = 0x00000
L_V = 0x10000
L_W = 0x20000
L_Q = 0x24000
L_P = 0x24600
L_MX = 0x25000
L_FL = L_MX + 64
L_O = 0x25100
L_WT = 0x25300
LDS_BYTES = 0x25700
BLOCK = 384
W_EP = 0x000000
W_GF = 0x008000
W_ML = 0x010000
W_QA = 0x080000
W_QB = 0x100000
XI = 0x40000
W_OX = 0x180000
OXS = 2048 + 128
W_FX = 0x290000
FXS = 2048 + 128
WS_BYTES = 0x320000
SCALE = (128 ** -0.5) * math.log2(math.e)
EPC_LO = 0x9E3779B9
EPC_HI = 0x7F4A7C15
TOTAL = 131072 + 16384
def f2u(f): return struct.unpack("<I", struct.pack("<f", f))[0]

class Cfg:
    stamps = False
    minst = False
    nocst = True
    pol = "nt"
    wpol = "nt"
    mo1 = 24
    mo2 = 44
    sw = 104
    trig = 36
    fast = True
    oxpf = 0
    oxpfl = "sc1"
    mlpref = True
    cwarm = True
    gate = True
    pure = 0
    tight = False
    half = True
    wb = 0
    fxs = 'sc1'
    fxl = 'sc1'
    gfs = 'sc1'
    outs = ''
    ilv = 0
    gpriv = False
    gown = False
    gpos = 0
    gsl = 0
    qspf = False
    g2 = 0
    gs = 4
    rot = 0
    emu = True
    ovl = True
    osleep = 0
    mlt = 128
    mlp1 = True
    il = True
    def __init__(self, **kw):
        for k, v in kw.items():
            assert hasattr(self, k), k
            setattr(self, k, v)

def gen(cfg):
    a = Asm()
    S0 = 60
    def stamp(k):
        if cfg.stamps or (cfg.minst and k == 0):
            a(f"s_memrealtime s[{S0+2*k}:{S0+1+2*k}]")
    def write_stamps(n, force=False):
        if not cfg.stamps and not force: return
        a("s_waitcnt lgkmcnt(0)")
        a("s_lshl_b32 s56, s2, 4")
        a("s_add_u32 s56, s56, s20")
        a("s_lshl_b32 s56, s56, 8")
        a(f"s_add_u32 s56, s56, {STAMP_OFF}")
        a("s_add_u32 s56, s18, s56")
        a("s_addc_u32 s57, s19, 0")
        a("s_mov_b64 exec, 1")
        a("v_mov_b32 v2, 0")
        for k in range(n):
            a(f"v_mov_b32 v0, s{S0+2*k}")
            a(f"v_mov_b32 v1, s{S0+1+2*k}")
            a(f"global_store_dwordx2 v2, v[0:1], s[56:57] offset:{8*k}")
            a("s_nop 1")
    def ws_srd():
        a("s_mov_b32 s40, s18"); a("s_mov_b32 s41, s19"); a(f"s_mov_b32 s42, {WS_BYTES}"); a("s_mov_b32 s43, 0x20000")
    def epoch_load():
        a(f"s_load_dwordx2 s[50:51], s[18:19], {W_EP}")
    def epoch_fix():
        a(f"s_add_u32 s50, s50, {EPC_LO:#x}")
        a(f"s_addc_u32 s51, s51, {EPC_HI:#x}")
        a("s_and_b32 s52, s51, 0xff")
        a("s_movk_i32 s53, 0xff")
    def lds_wait_ge(name, vaddr, off, vt, thr, cnt="s47", sleep=1):
        a.label(name)
        a(f"ds_read_b32 {vt}, {vaddr} offset:{off}")
        a(f"s_sub_u32 {cnt}, {cnt}, 1")
        a(f"s_cbranch_scc1 {name}_done")
        a("s_waitcnt lgkmcnt(0)")
        a(f"v_cmp_gt_i32 vcc, {thr}, {vt}")
        a(f"s_cbranch_vccz {name}_done")
        if sleep: a(f"s_sleep {sleep}")
        a(f"s_branch {name}")
        a.label(f"{name}_done")
    def pflag_wait(name, vaddr, r0, vt, sleep=0):
        a.label(name)
        a(f"ds_read_b128 v[{r0}:{r0+3}], {vaddr} offset:16")
        a("s_sub_u32 s47, s47, 1")
        a(f"s_cbranch_scc1 {name}_done")
        a("s_waitcnt lgkmcnt(0)")
        a(f"v_bitop3_b32 {vt}, v{r0}, v{r0+1}, v{r0+2} bitop3:0x80")
        a(f"v_and_b32 {vt}, {vt}, v{r0+3}")
        a(f"v_cmp_eq_u32 vcc, 0, {vt}")
        if sleep: a(f"s_sleep {sleep}")
        a(f"s_cbranch_vccnz {name}")
        a.label(f"{name}_done")
    def chk4(lo, hi, b0, first):
        a(f"v_xor_b32 v{b0}, s52, v{b0}")
        a(f"v_xor_b32 v{b0+2}, s52, v{b0+2}")
        if first:
            a(f"v_bitop3_b32 {hi}, v{b0+1}, v{b0+3}, s50 bitop3:0x7e")
            a(f"v_or_b32 {lo}, v{b0}, v{b0+2}")
        else:
            a(f"v_bitop3_b32 {hi}, {hi}, v{b0+1}, s50 bitop3:0xf6")
            a(f"v_or3_b32 {lo}, {lo}, v{b0}, v{b0+2}")
            a(f"v_bitop3_b32 {hi}, {hi}, v{b0+3}, s50 bitop3:0xf6")
    def chk_end(lo, hi):
        a(f"v_and_or_b32 {lo}, {lo}, s53, {hi}")
        a(f"v_cmp_ne_u32 vcc, 0, {lo}")

    a.label("L_start")
    stamp(0)
    a("s_cmp_ge_u32 s2, 256")
    a("s_cbranch_scc1 L_end")
    a("s_load_dwordx16 s[4:19], s[0:1], 0")
    a("v_lshrrev_b32 v1, 6, v0")
    a("v_and_b32 v0, 63, v0")
    a("s_and_b32 s21, s2, 7")
    a("v_readfirstlane_b32 s20, v1")
    a("s_lshr_b32 s22, s2, 3")
    a("s_lshr_b32 s23, s22, 4")
    a("s_and_b32 s24, s22, 15")
    a("v_and_b32 v1, 15, v0")
    a("v_lshrrev_b32 v2, 4, v0")
    a("s_cmp_eq_u32 s20, 1")
    a("s_cbranch_scc1 L_loader")
    a("s_cmp_eq_u32 s20, 0")
    a("s_cbranch_scc1 L_qstart")
    if cfg.cwarm:
        a("s_getpc_b64 s[36:37]")
        a.label("L_pc")
        a("s_and_b32 s3, s22, 3")
        a("s_lshl_b32 s3, s3, 2")
        a("s_add_u32 s3, s3, s20")
        a("s_lshl_b32 s3, s3, 10")
        a("s_sub_u32 s3, s3, 2048")
        a("v_lshl_add_u32 v20, v0, 4, s3")
        a("v_min_u32 v20, L_end - L_pc - 16, v20")
        a("global_load_dword v32, v20, s[36:37]")
    a("s_barrier")
    a("s_branch L_compute")

    a.label("L_qstart")
    a("v_lshlrev_b32 v3, 2, v0")
    a(f"v_add_u32 v3, {L_MX}, v3")
    a("v_cmp_gt_u32 vcc, 16, v0")
    a("s_lshr_b32 s25, s22, 3")
    a("s_and_b32 s26, s22, 7")
    a("v_cndmask_b32_e64 v4, 0, -1, vcc")
    a("ds_write_b32 v3, v4")
    a("v_and_b32 v3, 1, v0")
    a("v_lshlrev_b32 v3, 10, v3")
    a("v_lshl_add_u32 v3, v2, 4, v3")
    a("s_lshl_b32 s27, s25, 8")
    a("v_add_u32 v3, s27, v3")
    a("v_and_b32 v4, 7, v0")
    a("v_and_b32 v5, 1, v2")
    a("v_lshlrev_b32 v5, 1, v5")
    a("v_xor_b32 v4, v4, v5")
    a("v_lshlrev_b32 v4, 4, v4")
    a("v_lshrrev_b32 v5, 3, v0")
    a("v_lshl_add_u32 v4, v5, 13, v4")
    a("v_xor_b32 v5, 64, v4")
    a(f"v_add_u32 v5, {65536 - 1024}, v5")
    a("s_lshl_b32 s27, s25, 20")
    a("s_lshl_b32 s3, s21, 10")
    a("s_add_u32 s27, s27, s3")
    a("s_lshl_b32 s3, s26, 7")
    a("s_add_u32 s27, s27, s3")
    a(f"s_sub_u32 s30, {512*8192}, s27")
    a("s_mov_b32 s31, 0x20000")
    a(f"s_mov_b32 m0, {L_W}")
    a("s_mov_b32 s3, 0")
    a("s_waitcnt lgkmcnt(0)")
    stamp(1)
    a("s_add_u32 s28, s10, s27"); a("s_addc_u32 s29, s11, 0")
    for st in range(4):
        a(f"global_load_dwordx4 v[{8+4*st}:{11+4*st}], v3, s[4:5] offset:{st*64}")
    a.label("L_wql")
    a(f"buffer_load_dwordx4 v4, s[28:31], s3 offen {cfg.wpol} lds")
    a(f"buffer_load_dwordx4 v5, s[28:31], s3 offen offset:1024 {cfg.wpol} lds")
    a("s_add_u32 m0, m0, 2048")
    a("s_add_u32 s3, s3, 0x20000")
    a("s_cmp_lt_u32 s3, 0x100000")
    a("s_cbranch_scc1 L_wql")
    a("s_barrier")
    a("s_branch L_qrest")

    a.label("L_loader")
    a("v_xor_b32 v3, v1, v2")
    a("v_lshlrev_b32 v3, 4, v3")
    a("v_lshl_add_u32 v4, v2, 8, v3")
    for i in range(1, 4): a(f"v_xor_b32 v{4+i}, {i*64}, v4")
    a(f"v_mov_b32 v11, {L_FL}")
    a("s_lshl_b32 s25, s23, 3")
    a("s_add_u32 s25, s25, s21")
    a("s_lshl_b32 s25, s25, 23")
    if not cfg.ilv:
        a("s_lshl_b32 s26, s24, 16")
        a("s_add_u32 s25, s25, s26")
    a(f"s_add_u32 s25, s25, {28672*256}")
    if cfg.ilv == 2:
        a("s_lshl_b32 s45, s23, 3"); a("s_add_u32 s45, s45, s21"); a("s_lshl_b32 s45, s45, 16")
        a("s_lshl_b32 s46, s24, 12"); a("s_add_u32 s45, s45, s46")
    elif cfg.rot == 0:
        a("s_lshl_b32 s45, s24, 12")
    elif cfg.rot == 1:
        a("s_lshl_b32 s45, s21, 1"); a("s_add_u32 s45, s45, s24"); a("s_and_b32 s45, s45, 15"); a("s_lshl_b32 s45, s45, 12")
    elif cfg.rot == 2:
        a("s_mul_i32 s45, s2, 5"); a("s_and_b32 s45, s45, 15"); a("s_lshl_b32 s45, s45, 12")
    elif cfg.rot == 3:
        a("s_mov_b32 s45, 0")
    elif cfg.rot == 4:
        a("s_mul_i32 s45, s24, 7"); a("s_mul_i32 s46, s21, 3"); a("s_add_u32 s45, s45, s46"); a("s_lshl_b32 s46, s23, 3"); a("s_add_u32 s45, s45, s46"); a("s_and_b32 s45, s45, 15"); a("s_lshl_b32 s45, s45, 12")
    elif cfg.rot == 5:
        a("s_lshr_b32 s45, s22, 1"); a("s_lshl_b32 s45, s45, 12")
    a("s_mov_b32 s48, 0")
    a(f"s_mov_b32 s30, {0x100000 if cfg.ilv else 0x10000}"); a("s_mov_b32 s31, 0x20000")
    a(f"s_mov_b32 m0, {L_K}")
    a("s_waitcnt lgkmcnt(0)")
    a("s_add_u32 s28, s6, s25"); a("s_addc_u32 s29, s7, 0")
    a("s_barrier")
    stamp(1)
    def sloop(name, end, srd, vf, mo):
        a.label(name)
        a(f"s_waitcnt vmcnt({mo-4})")
        a(f"s_add_i32 s46, m0, {-(mo-4)*1024}")
        a("s_max_i32 s48, s48, s46")
        a("v_mov_b32 v12, s48")
        a("ds_write_b32 v11, v12 offset:4")
        for i in range(4):
            a(f"buffer_load_dwordx4 v{vf(i)}, {srd}, s45 offen offset:{i*1024} {cfg.pol} lds")
        a(f"s_add_u32 s45, s45, {65536 if cfg.ilv else 4096}")
        a(f"s_and_b32 s45, s45, {0xfffff if cfg.ilv else 0xffff}")
        a("s_add_u32 m0, m0, 4096")
        a(f"s_cmp_lt_u32 m0, {end}")
        a(f"s_cbranch_scc1 {name}")
    kf = lambda i: 4+i
    vf = lambda i: 8+(i>>1)
    sloop("L_l1", L_V, "s[28:31]", kf, cfg.mo1)
    stamp(2)
    a("v_lshlrev_b32 v3, 1, v2")
    a("v_xor_b32 v3, v1, v3")
    a("v_lshlrev_b32 v3, 4, v3")
    a("v_lshl_add_u32 v8, v2, 8, v3")
    a("v_xor_b32 v9, 0x80, v8")
    a("s_add_u32 s32, s8, s25"); a("s_addc_u32 s33, s9, 0"); a(f"s_mov_b32 s34, {0x100000 if cfg.ilv else 0x10000}"); a("s_mov_b32 s35, 0x20000")
    epoch_load()
    cuts = sorted(set([c for c in (cfg.sw - 64, cfg.oxpf) if 0 < c < 64] + [64]))
    for ci, c in enumerate(cuts):
        sloop(f"L_lv{ci}", L_V + c*1024, "s[32:35]", vf, cfg.mo1 if c <= cfg.sw - 64 else cfg.mo2)
        if ci == 0:
            ws_srd()
            a("s_lshl_b32 s44, s21, 5")
            a("s_add_u32 s44, s44, s22")
            a("v_lshl_add_u32 v10, v2, 10, v3")
            a("v_xor_b32 v15, 0x80, v10")
            a("s_lshl_b32 s26, s21, 19")
            a("s_lshr_b32 s27, s22, 2")
            a("s_lshl_b32 s27, s27, 16")
            a("s_add_u32 s26, s26, s27")
            a("s_and_b32 s27, s22, 3")
            a("s_lshl_b32 s27, s27, 8")
            a("s_add_u32 s26, s26, s27")
            a("s_add_u32 s36, s12, s26"); a("s_addc_u32 s37, s13, 0"); a(f"s_sub_u32 s38, {4096*1024}, s26"); a("s_mov_b32 s39, 0x20000")
        if c == cfg.oxpf:
            a(f"s_mul_i32 s3, s44, {OXS}")
            a(f"s_add_u32 s3, s3, {W_OX}")
            a("v_lshlrev_b32 v13, 7, v0")
            a("s_mov_b32 exec_hi, 0")
            a(f"buffer_load_dword v24, v13, s[40:43], s3 offen {cfg.oxpfl}")
            a("s_mov_b32 exec_hi, -1")
    stamp(3)
    a("s_mov_b32 s47, 0x100000")
    lds_wait_ge("L_wqc", "v11", 12, "v13", 1, sleep=0)
    a("s_waitcnt lgkmcnt(0)")
    epoch_fix()
    mo = cfg.mo2
    for i in range(16):
        if i % 4 == 0:
            a(f"s_waitcnt vmcnt({mo-4})")
            a(f"s_max_i32 s48, s48, {131072 + i*1024 - (mo-4)*1024}")
            a("v_mov_b32 v12, s48")
            a("ds_write_b32 v11, v12 offset:4")
        a(f"s_mov_b32 m0, {L_W + i*1024}")
        a(f"s_mov_b32 s3, {i*4096}")
        a(f"buffer_load_dwordx4 v{15 if (i>>1)&1 else 10}, s[36:39], s3 offen {cfg.wpol} lds")
    stamp(4)
    for n in (56, 48, 40, 32, 24, 16, 0):
        if n >= mo: continue
        a(f"v_mov_b32 v12, {TOTAL - n*1024}")
        a(f"s_waitcnt vmcnt({n})")
        a("ds_write_b32 v11, v12 offset:4")
        if n == 16: stamp(6)
    stamp(5)
    if cfg.pure:
        write_stamps(7)
        a("s_endpgm")
    a("v_lshrrev_b32 v14, 1, v0")
    a(f"v_mul_u32_u24 v14, {FXS}, v14")
    a("v_and_b32 v13, 1, v0")
    a("v_lshl_add_u32 v14, v13, 4, v14")
    a("s_lshr_b32 s26, s21, 1")
    a(f"s_mul_i32 s3, s26, {64*FXS}")
    a("s_and_b32 s27, s44, 63")
    a("s_lshl_b32 s27, s27, 5")
    a("s_add_u32 s3, s3, s27")
    a(f"s_add_u32 s3, s3, {W_FX}")
    a(f"s_add_u32 s46, s3, {32*FXS}")
    a("s_and_b32 s49, s21, 1")
    a("s_lshl_b32 s49, s49, 10")
    a("s_lshl_b32 s26, s26, 8")
    a("s_add_u32 s49, s49, s26")
    a("s_lshl_b32 s26, s22, 3")
    a("s_add_u32 s49, s49, s26")
    a("v_lshlrev_b32 v3, 2, v13")
    a("v_lshrrev_b32 v4, 5, v0")
    a("v_lshl_add_u32 v3, v4, 1, v3")
    a("v_add_u32 v3, s49, v3")
    a(f"s_lshl_b32 s27, {'s2' if cfg.gpriv else 's22'}, 7")
    a(f"s_add_u32 s27, s27, {W_GF}")
    a("s_add_u32 s58, s18, s27")
    a("s_addc_u32 s59, s19, 0")
    a("s_mov_b32 s47, 0x20000")
    F = 84
    if cfg.gown:
        a("s_mov_b32 s47, 0x100000")
        lds_wait_ge("L_gown", "v11", 32, "v12", 1, sleep=1)
        a("s_mov_b32 s47, 0x20000")
    if cfg.gate and not cfg.g2:
        a("s_branch L_gate1")
        a.label("L_gate")
        if cfg.gsl: a(f"s_sleep {cfg.gsl}")
        a.label("L_gate1")
        a(f"s_load_dwordx16 s[{F}:{F+15}], s[58:59], 0 glc")
        a("s_sub_u32 s47, s47, 1")
        a("s_cbranch_scc1 L_gate_done")
        a("s_waitcnt lgkmcnt(0)")
        for k in range(8):
            a(f"s_cmp_lg_u64 s[{F+2*k}:{F+2*k+1}], s[50:51]")
            a("s_cbranch_scc1 L_gate")
        a.label("L_gate_done")
        stamp(7)
    if cfg.gate and cfg.g2:
        F2 = 22 - 2
        FA, FB = 84, 64
        assert not cfg.stamps
        a("s_waitcnt lgkmcnt(0)")
        a(f"s_load_dwordx16 s[{FA}:{FA+15}], s[58:59], 0 glc")
        a(f"s_sleep {cfg.gs}")
        a.label("L_gate")
        a(f"s_load_dwordx16 s[{FB}:{FB+15}], s[58:59], 0 glc")
        a("s_sub_u32 s47, s47, 1")
        a("s_cbranch_scc1 L_gate_done")
        a(f"s_waitcnt lgkmcnt({cfg.g2})")
        for k in range(8):
            a(f"s_cmp_lg_u64 s[{FA+2*k}:{FA+2*k+1}], s[50:51]")
            a("s_cbranch_scc1 L_gateb")
        a("s_branch L_gate_done")
        a.label("L_gateb")
        a(f"s_load_dwordx16 s[{FA}:{FA+15}], s[58:59], 0 glc")
        a(f"s_waitcnt lgkmcnt({cfg.g2})")
        for k in range(8):
            a(f"s_cmp_lg_u64 s[{FB+2*k}:{FB+2*k+1}], s[50:51]")
            a("s_cbranch_scc1 L_gate")
        a.label("L_gate_done")
    a.label("L_fpoll")
    a(f"buffer_load_dwordx4 v[16:19], v14, s[40:43], s3 offen {cfg.fxl}")
    a(f"buffer_load_dwordx4 v[20:23], v14, s[40:43], s46 offen {cfg.fxl}")
    a("s_sub_u32 s47, s47, 1")
    a("s_cbranch_scc1 L_fpoll_done")
    a("s_waitcnt vmcnt(1)")
    chk4("v12", "v13", 16, True)
    a("s_waitcnt vmcnt(0)")
    chk4("v12", "v13", 20, False)
    chk_end("v12", "v13")
    a("s_mov_b64 exec, vcc")
    a("s_cbranch_vccnz L_fpoll")
    a.label("L_fpoll_done")
    a("s_mov_b64 exec, -1")
    stamp(8)
    a("v_add_f32 v16, v16, v20")
    a("v_add_f32 v18, v18, v22")
    a("s_nop 1")
    a("v_permlane32_swap_b32 v16, v18")
    a("v_add_f32 v16, v16, v18")
    a("v_mov_b32 v18, v16")
    a("s_nop 1")
    a("v_permlane16_swap_b32 v16, v18")
    a("v_add_f32 v16, v16, v18")
    for ctl in ("quad_perm:[2,3,0,1]", "row_ror:4", "row_ror:8"):
        a("s_nop 1")
        a(f"v_add_f32_dpp v16, v16, v16 {ctl} row_mask:0xf bank_mask:0xf")
    a("s_mov_b32 exec_lo, 3")
    a("v_cvt_pk_bf16_f32 v16, v16, v16")
    a("s_mov_b32 exec_hi, 3")
    a(f"global_store_short v3, v16, s[14:15] {cfg.outs}")
    a("s_cmp_lg_u32 s2, 0")
    a("s_cbranch_scc1 L_noep")
    a("s_mov_b64 exec, 1")
    a("v_mov_b32 v4, s50")
    a("v_mov_b32 v5, s51")
    a(f"v_mov_b32 v3, {W_EP}")
    a("global_store_dwordx2 v3, v[4:5], s[18:19]")
    a.label("L_noep")
    stamp(9)
    write_stamps(10)
    if cfg.minst:
        a("s_memrealtime s[62:63]")
        write_stamps(2, True)
    a("s_endpgm")

    a.label("L_qrest")
    a("s_setprio 3")
    epoch_load()
    stamp(2)
    ws_srd()
    a("s_lshl_b32 s44, s21, 5")
    a("s_add_u32 s44, s44, s22")
    a("s_lshl_b32 s48, s21, 15")
    a("s_lshl_b32 s3, s25, 12")
    a("s_add_u32 s48, s48, s3")
    a("s_lshl_b32 s3, s26, 9")
    a("s_add_u32 s48, s48, s3")
    a("s_lshl_b32 s49, s44, 3")
    a(f"s_add_u32 s49, s49, {XI}")
    a("v_lshlrev_b32 v90, 3, v0")
    if cfg.qspf:
        a(f"s_add_u32 s58, s48, {W_QA}")
        a("s_add_u32 s58, s18, s58")
        a("s_addc_u32 s59, s19, 0")
        for bb in range(2):
            for k in range(4):
                a(f"s_load_dword s{84+bb*4+k}, s[58:59], {bb*16384 + k*128}")
    a("s_getreg_b32 s54, hwreg(HW_REG_XCC_ID)")
    a("s_and_b32 s54, s54, 15")
    a("s_lshl_b32 s54, s54, 8")
    a("v_lshrrev_b32 v6, 2, v1")
    a("v_lshl_add_u32 v6, v2, 3, v6")
    a("v_lshlrev_b32 v6, 7, v6")
    a("v_and_b32 v7, 3, v0")
    a("v_lshl_add_u32 v6, v7, 3, v6")
    a("v_lshrrev_b32 v7, 3, v1")
    a("v_and_b32 v28, 1, v2")
    a("v_lshl_or_b32 v7, v28, 1, v7")
    a("v_lshl_add_u32 v6, v7, 5, v6")
    a(f"v_add_u32 v28, {L_W}, v6")
    for nt in range(1, 4):
        a(f"v_xor_b32 v{28+nt}, {nt*32}, v28")
    a("s_waitcnt lgkmcnt(0)")
    epoch_fix()
    a("s_or_b32 s55, s54, s52")
    def q_reads(st):
        a(f"s_waitcnt vmcnt({16 - 4*(st+1)}) lgkmcnt(7)")
        for nt in range(4):
            base = 32 + (st & 1)*16 + nt*4
            a(f"ds_read_b64_tr_b16 v[{base}:{base+1}], v{28+nt} offset:{st*4096}")
            a(f"ds_read_b64_tr_b16 v[{base+2}:{base+3}], v{28+nt} offset:{st*4096+512}")
    def q_mfma(st):
        for nt in range(4):
            base = 32 + (st & 1)*16 + nt*4
            c = "0" if st == 0 else f"v[{64+4*nt}:{67+4*nt}]"
            a(f"v_mfma_f32_16x16x32_bf16 v[{64+4*nt}:{67+4*nt}], v[{8+4*st}:{11+4*st}], v[{base}:{base+3}], {c}")
    q_reads(0)
    stamp(3)
    q_reads(1)
    a("s_waitcnt lgkmcnt(8)" if not cfg.stamps else "s_waitcnt lgkmcnt(0)")
    q_mfma(0)
    q_reads(2)
    a("s_waitcnt lgkmcnt(8)")
    q_mfma(1)
    q_reads(3)
    a("s_waitcnt lgkmcnt(8)")
    q_mfma(2)
    a("s_waitcnt lgkmcnt(0)")
    q_mfma(3)
    a(f"v_mov_b32 v6, {L_FL}")
    a("v_mov_b32 v7, 1")
    a("ds_write_b32 v6, v7 offset:12")
    if cfg.pure:
        a("s_waitcnt lgkmcnt(0)")
        a("s_endpgm")
    a("v_mov_b32 v81, s50")
    a("v_mov_b32 v83, s50")
    a("v_mov_b32 v85, s50")
    a("v_mov_b32 v84, s55")
    a("v_mov_b32 v86, s52")
    for nt in range(1, 4):
        for bb in range(2):
            a(f"v_mov_b32_dpp v{64+bb}, v{64+4*nt+bb} quad_perm:[0,1,2,3] row_mask:{1<<nt:#x} bank_mask:0xf")
    for bb in range(2):
        a(f"v_add_u32 v{64+bb}, 0x80, v{64+bb}")
        a(f"v_bfi_b32 v{80+2*bb}, s53, v86, v{64+bb}")
    def q_publish(base, fl):
        a(f"s_add_u32 s34, s48, {base}")
        a(f"s_add_u32 s35, s48, {base + 16384}")
        a(f"s_add_u32 s36, s49, {base}")
        a(f"buffer_store_dwordx2 v[80:81], v90, s[40:43], s34 offen {fl}")
        a(f"buffer_store_dwordx2 v[82:83], v90, s[40:43], s35 offen {fl}")
        a("s_mov_b64 exec, 1")
        a(f"buffer_store_dwordx2 v[84:85], v90, s[40:43], s36 offen {fl}")
        a("s_mov_b64 exec, -1")
    if cfg.fast: q_publish(W_QA, "")
    stamp(4)
    a("s_lshl_b32 s3, s21, 15")
    a("s_lshl_b32 s45, s23, 14")
    a("s_add_u32 s3, s3, s45")
    a(f"s_add_u32 s3, s3, {W_QA}")
    a("s_lshl_b32 s46, s21, 8")
    a(f"s_add_u32 s46, s46, {W_QA + XI}")
    a("v_lshlrev_b32 v4, 4, v0")
    a("v_lshlrev_b32 v5, 2, v0")
    a(f"v_add_u32 v5, {L_Q}, v5")
    a("v_and_b32 v3, 31, v0")
    a("v_lshlrev_b32 v3, 3, v3")
    a("s_mov_b32 s47, 0x100000")
    lds_wait_ge("L_tw", "v6", 4, "v8", cfg.trig*1024)
    stamp(5)
    a("s_mov_b32 s47, 0")
    B = 8
    a.label("L_qpoll")
    for k in range(16):
        if k % 4 == 0: a(f"s_add_u32 s45, s3, {(k//4)*4096}")
        a(f"buffer_load_dwordx4 v[{B+4*k}:{B+3+4*k}], v4, s[40:43], s45 offen offset:{(k&3)*1024} sc1")
    a("buffer_load_dwordx2 v[72:73], v3, s[40:43], s46 offen sc1")
    a("s_add_u32 s47, s47, 1")
    for k in range(16):
        a(f"s_waitcnt vmcnt({16-k})")
        chk4("v88", "v89", B+4*k, k == 0)
    a("s_waitcnt vmcnt(0)")
    a("v_xor_b32 v72, s52, v72")
    a("v_or_b32 v88, v88, v72")
    a("v_bitop3_b32 v89, v89, v73, s50 bitop3:0xf6")
    chk_end("v88", "v89")
    a("s_cbranch_vccz L_qok")
    a("s_cmp_lt_u32 s47, 4")
    a("s_cbranch_scc1 L_qpoll")
    a("s_cmp_lg_u32 s47, 4")
    a("s_cbranch_scc1 L_qnob")
    q_publish(W_QB, "sc1")
    a.label("L_qnob")
    a(f"s_xor_b32 s3, s3, {W_QA ^ W_QB}")
    a(f"s_xor_b32 s46, s46, {W_QA ^ W_QB}")
    a("s_cmp_lt_u32 s47, 0x20000")
    a("s_cbranch_scc1 L_qpoll")
    a.label("L_qok")
    stamp(6)
    for h in range(4):
        for e in range(2):
            xs = [B + 16*rb + 4*h + 2*e for rb in range(4)]
            a(f"v_add_f32 v{xs[0]}, v{xs[0]}, v{xs[1]}")
            a(f"v_add_f32 v{xs[2]}, v{xs[2]}, v{xs[3]}")
            a(f"v_add_f32 v{xs[0]}, v{xs[0]}, v{xs[2]}")
        a(f"v_cvt_pk_bf16_f32 v{76+h}, v{B+4*h}, v{B+2+4*h}")
        a(f"ds_write_b32 v5, v{76+h} offset:{h*320}")
    a("v_cmp_ne_u32 vcc, s54, v72")
    if cfg.fast:
        a("v_mov_b32 v7, 2")
        a("s_cbranch_vccz L_qfast")
    a("v_mov_b32 v7, 1")
    a("s_cmp_gt_u32 s47, 4")
    a("s_cbranch_scc1 L_qfast")
    q_publish(W_QB, "sc1")
    a.label("L_qfast")
    a("ds_write_b32 v6, v7")
    stamp(7)
    a("v_lshrrev_b32 v25, 1, v0")
    a("v_lshlrev_b32 v25, 8, v25")
    a("v_and_b32 v20, 1, v0")
    a("v_lshl_add_u32 v25, v20, 5, v25")
    a("s_lshl_b32 s30, s21, 13")
    a("s_lshl_b32 s27, s25, 6")
    a("s_add_u32 s30, s30, s27")
    a(f"s_add_u32 s30, s30, {W_ML}")
    a("v_bfe_u32 v4, v0, 1, 3")
    a("v_lshlrev_b32 v4, 4, v4")
    a("v_lshl_add_u32 v4, v2, 2, v4")
    a(f"v_add_u32 v4, {L_WT}, v4")
    a("s_mov_b32 s47, 0x100000")
    if cfg.mlp1:
        pflag_wait("L_qpw", "v6", 8, "v12", sleep=1)
        a("s_branch L_mlpoll")
    a.label("L_mlagain")
    lds_wait_ge("L_mlt", "v6", 4, "v12", cfg.mlt*1024, sleep=1)
    a.label("L_mlpoll")
    a("buffer_load_dwordx4 v[96:99], v25, s[40:43], s30 offen sc1")
    a("buffer_load_dwordx4 v[100:103], v25, s[40:43], s30 offen offset:16 sc1")
    a("s_sub_u32 s47, s47, 16")
    a("s_cbranch_scc1 L_ml_done")
    a("s_waitcnt vmcnt(0)")
    chk4("v104", "v105", 96, True)
    chk4("v104", "v105", 100, False)
    chk_end("v104", "v105")
    a("s_cbranch_vccnz L_mlagain")
    a.label("L_ml_done")
    stamp(8)
    a("v_lshrrev_b32 v100, 8, v100")
    a("v_add_f32 v98, v98, v102")
    a("v_bfi_b32 v96, s53, v100, v96")
    a("s_nop 1")
    a("v_max_f32_dpp v104, v96, v96 quad_perm:[2,3,0,1] row_mask:0xf bank_mask:0xf")
    for ctl in ("row_ror:4", "row_ror:8"):
        a("s_nop 1")
        a(f"v_max_f32_dpp v104, v104, v104 {ctl} row_mask:0xf bank_mask:0xf")
    a("v_mov_b32 v105, v104")
    a("s_nop 1")
    a("v_permlane16_swap_b32 v105, v104")
    a("v_max_f32 v104, v104, v105")
    a("v_sub_f32 v96, v96, v104")
    a("v_exp_f32 v96, v96")
    a("s_nop 0")
    a("v_mul_f32 v104, v96, v98")
    for ctl in ("quad_perm:[1,0,3,2]", "quad_perm:[2,3,0,1]", "row_ror:4", "row_ror:8"):
        a("s_nop 1")
        a(f"v_add_f32_dpp v104, v104, v104 {ctl} row_mask:0xf bank_mask:0xf")
    a("v_mov_b32 v105, v104")
    a("s_nop 1")
    a("v_permlane16_swap_b32 v105, v104")
    a("v_add_f32 v104, v104, v105")
    a("v_rcp_f32 v104, v104")
    a("s_nop 0")
    a("v_mul_f32 v104, v96, v104")
    a("ds_write_b32 v4, v104")
    a("ds_write_b32 v6, v7 offset:8")
    stamp(9)
    if cfg.stamps and cfg.nocst: a("s_sleep 100")
    write_stamps(10)
    a("s_waitcnt lgkmcnt(0)")
    a("s_endpgm")

    a.label("L_compute")
    if cfg.pure: a("s_endpgm")
    a("s_sub_u32 s25, s20, 2")
    a(f"v_mov_b32 v15, {L_FL}")
    a("s_lshl_b32 s44, s21, 5")
    a("s_add_u32 s44, s44, s22")
    a("s_waitcnt lgkmcnt(0)")
    epoch_load()
    ws_srd()
    stamp(1)
    a("s_lshl_b32 s32, s44, 8")
    a("s_lshl_b32 s27, s25, 4")
    a("s_add_u32 s32, s32, s27")
    a(f"s_add_u32 s32, s32, {W_ML}")
    a("v_lshlrev_b32 v22, 6, v0")
    if cfg.mlpref:
        a("s_cmp_lg_u32 s25, 0")
        a("s_cbranch_scc1 L_nomlp")
        a("s_mov_b64 exec, 5")
        a("buffer_load_dword v32, v22, s[40:43], s32 offen sc1")
        a("s_mov_b64 exec, -1")
        a.label("L_nomlp")
    a(f"s_mul_i32 s28, s44, {OXS}")
    a("s_lshl_b32 s27, s25, 7")
    a("s_add_u32 s28, s28, s27")
    a(f"s_add_u32 s28, s28, {W_OX}")
    a("s_lshl_b32 s27, s25, 8")
    a("v_lshlrev_b32 v23, 9, v2")
    a("v_lshl_add_u32 v23, v1, 3, v23")
    a("s_and_b32 s31, s22, 3")
    a("s_lshl_b32 s31, s31, 6")
    a("s_lshr_b32 s3, s44, 2")
    a("s_add_u32 s31, s31, s3")
    a(f"s_mul_i32 s31, s31, {FXS}")
    a("s_add_u32 s31, s31, s27")
    a(f"s_add_u32 s31, s31, {W_FX}")
    a("v_and_b32 v29, 31, v0")
    a("v_lshlrev_b32 v29, 3, v29")
    a("v_lshrrev_b32 v3, 5, v0")
    a("v_lshl_add_u32 v29, v3, 10, v29")
    a(f"s_lshl_b32 s30, s22, {10 if cfg.gpriv else 7}")
    a("s_lshl_b32 s3, s21, 3")
    a("s_add_u32 s30, s30, s3")
    a(f"s_add_u32 s30, s30, {W_GF}")
    a("v_xor_b32 v3, v1, v2")
    a("v_lshlrev_b32 v3, 4, v3")
    a("v_lshl_add_u32 v4, v1, 8, v3")
    a("s_lshl_b32 s3, s25, 14")
    a("v_add_u32 v4, s3, v4")
    for st in range(1, 4): a(f"v_xor_b32 v{4+st}, {st*64}, v4")
    a("v_and_b32 v3, 3, v0")
    a("v_mul_u32_u24 v8, 320, v3")
    a("v_lshl_add_u32 v8, v2, 4, v8")
    a(f"v_add_u32 v8, {L_Q}, v8")
    a("v_lshlrev_b32 v10, 4, v3")
    a(f"v_add_u32 v10, {L_MX}, v10")
    a("s_lshl_b32 s3, s25, 2")
    a("v_add_u32 v9, s3, v10")
    a("v_add_u32 v30, s3, v15")
    a("v_mul_u32_u24 v11, 576, v3")
    a("v_lshrrev_b32 v12, 2, v1")
    a("v_lshl_add_u32 v11, v12, 5, v11")
    a("v_lshl_add_u32 v11, v2, 3, v11")
    a("s_lshl_b32 s3, s25, 7")
    a(f"s_add_u32 s3, s3, {L_P}")
    a("v_add_u32 v11, s3, v11")
    a("v_mul_u32_u24 v12, 576, v12")
    a("v_lshl_add_u32 v12, v2, 4, v12")
    a(f"v_add_u32 v12, {L_P}, v12")
    a("v_lshrrev_b32 v13, 2, v1")
    a("v_and_b32 v14, 1, v2")
    a("v_lshl_or_b32 v14, v14, 2, v13")
    a("v_lshlrev_b32 v14, 1, v14")
    a("v_bfe_u32 v20, v0, 1, 1")
    a("s_lshl_b32 s3, s25, 2")
    a("v_or_b32 v20, s3, v20")
    a("v_xor_b32 v14, v14, v20")
    a("v_lshl_add_u32 v13, v2, 3, v13")
    a("v_lshlrev_b32 v13, 8, v13")
    a("v_lshl_add_u32 v13, v14, 4, v13")
    a("v_and_b32 v14, 1, v0")
    a("v_lshl_add_u32 v13, v14, 3, v13")
    a(f"v_add_u32 v13, {L_V}, v13")
    a("v_xor_b32 v14, 32, v13")
    a("v_lshrrev_b32 v25, 2, v0")
    a(f"v_mul_u32_u24 v24, {OXS}, v25")
    a("v_lshl_add_u32 v24, v3, 4, v24")
    a(f"s_mul_i32 s29, s21, {32*OXS}")
    a("s_lshr_b32 s27, s22, 2")
    a("s_lshl_b32 s27, s27, 8")
    a("s_add_u32 s29, s29, s27")
    a("s_lshl_b32 s27, s25, 6")
    a("s_add_u32 s29, s29, s27")
    a(f"s_add_u32 s29, s29, {W_OX}")
    a(f"s_add_u32 s33, s29, {16*OXS}")
    a("v_and_b32 v20, 7, v25")
    a("v_lshlrev_b32 v20, 4, v20")
    a("v_lshrrev_b32 v25, 5, v0")
    a("v_lshl_add_u32 v25, v25, 2, v20")
    a(f"v_add_u32 v25, {L_WT}, v25")
    a("v_bfe_u32 v26, v0, 3, 1")
    a("v_mul_u32_u24 v26, 144, v26")
    a("v_and_b32 v27, 1, v2")
    a("v_lshl_add_u32 v26, v27, 5, v26")
    a("v_lshl_add_u32 v26, v3, 2, v26")
    a("v_lshrrev_b32 v27, 5, v0")
    a("v_lshl_add_u32 v26, v27, 1, v26")
    a("s_lshr_b32 s27, s25, 1")
    a("s_lshl_b32 s27, s27, 6")
    a("s_and_b32 s3, s25, 1")
    a("s_lshl_b32 s3, s3, 4")
    a("s_add_u32 s27, s27, s3")
    a(f"s_add_u32 s27, s27, {L_O}")
    a("v_add_u32 v26, s27, v26")
    a("v_and_b32 v28, 1, v0")
    a("v_mul_u32_u24 v28, 144, v28")
    a("v_lshl_add_u32 v28, v2, 4, v28")
    a(f"v_add_u32 v28, {L_O}, v28")
    a(f"v_add_u32 v16, {L_W - L_V}, v13")
    a(f"v_add_u32 v17, {L_W - L_V}, v14")
    a("v_mov_b32 v27, 1")
    a("s_waitcnt lgkmcnt(0)")
    epoch_fix()
    a("v_mov_b32 v31, s52")
    a("v_mov_b32 v18, s50")
    a("v_mov_b32 v19, s51")
    a("s_movk_i32 s36, 0x3ff")
    a("s_and_b32 s88, s50, s36")
    a("s_bfe_u32 s89, s50, 0xa000a")
    a("s_bfe_u32 s90, s50, 0xa0014")
    a("s_and_b32 s91, s51, s36")
    a("v_and_b32 v20, 1, v0")
    a("v_cmp_eq_u32 vcc, 1, v20")
    a("v_mov_b32 v124, s88"); a("v_mov_b32 v125, s89"); a("v_mov_b32 v126, s90"); a("v_mov_b32 v127, s91")
    a("v_cndmask_b32 v2, v124, v126, vcc")
    a("v_cndmask_b32 v1, v125, v127, vcc")
    a("s_mov_b32 s47, 0x100000")
    a("s_add_u32 s38, s25, 1")
    a("s_lshl_b32 s38, s38, 14")
    lds_wait_ge("L_kw", "v15", 4, "v20", "s38")
    a("s_waitcnt vmcnt(0)")
    stamp(2)
    for t in range(4):
        for st in range(4):
            base = 32 + (t*4+st)*4
            a(f"ds_read_b128 v[{base}:{base+3}], v{4+st} offset:{t*4096}")
        if t == 1: a("s_waitcnt lgkmcnt(4)")
    lds_wait_ge("L_qw", "v15", 0, "v20", 1)
    stamp(3)
    for st in range(4):
        a(f"ds_read_b128 v[{96+4*st}:{99+4*st}], v8 offset:{st*64}")
    a("v_readfirstlane_b32 s34, v20")
    a("s_waitcnt lgkmcnt(0)")
    for st in range(4):
        for t in range(4):
            base = 32 + (t*4+st)*4
            c = "0" if st == 0 else f"v[{112+4*t}:{115+4*t}]"
            a(f"v_mfma_f32_16x16x32_bf16 v[{112+4*t}:{115+4*t}], v[{base}:{base+3}], v[{96+4*st}:{99+4*st}], {c}")
    a("s_nop 7")
    for t in range(1, 4):
        for r in range(4):
            a(f"v_mov_b32_dpp v{112+r}, v{112+4*t+r} quad_perm:[0,1,2,3] row_mask:0xf bank_mask:{1<<t:#x}")
    if cfg.emu:
        a(f"s_mov_b32 s26, {f2u(128 ** -0.5):#x}")
        a("s_mov_b32 s27, 0xffff0000")
        a("v_cvt_pk_bf16_f32 v96, v112, v113")
        a("v_cvt_pk_bf16_f32 v97, v114, v115")
        a("v_lshlrev_b32 v112, 16, v96"); a("v_and_b32 v113, s27, v96")
        a("v_lshlrev_b32 v114, 16, v97"); a("v_and_b32 v115, s27, v97")
        for r in range(4): a(f"v_mul_f32 v{112+r}, s26, v{112+r}")
        a("v_cvt_pk_bf16_f32 v96, v112, v113")
        a("v_cvt_pk_bf16_f32 v97, v114, v115")
        a("v_lshlrev_b32 v112, 16, v96"); a("v_and_b32 v113, s27, v96")
        a("v_lshlrev_b32 v114, 16, v97"); a("v_and_b32 v115, s27, v97")
    a("v_max3_f32 v20, v112, v113, v114")
    a("v_max_f32 v20, v20, v115")
    def allred(op, v, t):
        for ctl in ("row_ror:4", "row_ror:8"):
            a("s_nop 1")
            a(f"{op}_dpp {v}, {v}, {v} {ctl} row_mask:0xf bank_mask:0xf")
        for swp in ("v_permlane16_swap_b32", "v_permlane32_swap_b32"):
            a(f"v_mov_b32 {t}, {v}")
            a("s_nop 1")
            a(f"{swp} {t}, {v}")
            a("s_nop 1")
            a(f"{op} {v}, {v}, {t}")
    allred("v_max_f32", "v20", "v21")
    a("v_min_u32 v20, -2, v20")
    a("ds_write_b32 v9, v20")
    a.label("L_mw")
    a("ds_read_b128 v[96:99], v10")
    a("s_sub_u32 s47, s47, 1")
    a("s_cbranch_scc1 L_mw_done")
    a("s_waitcnt lgkmcnt(0)")
    a("v_max3_u32 v20, v96, v97, v98")
    a("v_max_u32 v20, v20, v99")
    a("v_cmp_eq_u32 vcc, -1, v20")
    a("s_cbranch_vccnz L_mw")
    a.label("L_mw_done")
    a("s_waitcnt lgkmcnt(0)")
    a(f"s_mov_b32 s26, {f2u(math.log2(math.e) if cfg.emu else SCALE):#x}")
    a("v_max3_f32 v20, v96, v97, v98")
    a("v_max_f32 v20, v20, v99")
    a("v_mul_f32 v20, s26, v20")
    for r in range(4): a(f"v_fma_f32 v{112+r}, v{112+r}, s26, -v20")
    for r in range(4): a(f"v_exp_f32 v{112+r}, v{112+r}")
    a("s_and_b32 s27, s25, 1")
    a("v_cvt_pk_bf16_f32 v96, v112, v113")
    a("v_cvt_pk_bf16_f32 v97, v114, v115")
    a("ds_write_b64 v11, v[96:97]")
    a("v_add_f32 v21, v112, v113")
    a("v_add_f32 v98, v114, v115")
    a("v_add_f32 v21, v21, v98")
    allred("v_add_f32", "v21", "v98")
    a("s_lshl_b32 s27, s27, 3")
    a("v_lshlrev_b32 v20, s27, v20")
    a("v_bfi_b32 v100, s53, v31, v20")
    a("v_mov_b32 v101, s50")
    a("v_bfi_b32 v102, s53, v31, v21")
    a("v_mov_b32 v103, s50")
    a("s_mov_b64 exec, 0xf")
    a("s_cmp_eq_u32 s34, 2")
    a("s_cbranch_scc0 L_mlslow")
    a("buffer_store_dwordx4 v[100:103], v22, s[40:43], s32 offen")
    a("s_branch L_mlpub")
    a.label("L_mlslow")
    a("buffer_store_dwordx4 v[100:103], v22, s[40:43], s32 offen sc1")
    a.label("L_mlpub")
    a("s_mov_b64 exec, -1")
    a("ds_write_b32 v30, v27 offset:16")
    oxs = ("s29", "s33", "s35", "s39")
    def ox_loads():
        for k in range(4):
            a(f"buffer_load_dwordx4 v[{64+4*k}:{67+4*k}], v24, s[40:43], {oxs[k]} offen sc1")
    stamp(4)
    a("v_mov_b32 v121, s50")
    a("v_mov_b32 v123, s50")
    pflag_wait("L_pw", "v15", 96, "v20")
    stamp(5)
    for u in range(8):
        a(f"ds_read_b128 v[{32+4*u}:{35+4*u}], v12 offset:{u*64}")
    def wo_reads():
        for e in range(2):
            for ks in range(2):
                base = 80 + (e*2+ks)*4
                a(f"ds_read_b64_tr_b16 v[{base}:{base+1}], v{16+e} offset:{ks*8192}")
                a(f"ds_read_b64_tr_b16 v[{base+2}:{base+3}], v{16+e} offset:{ks*8192+1024}")
    def v_mfma(u):
        vb = 96 + (u & 1)*8
        for e in range(2):
            c = "0" if u == 0 else f"v[{112+4*e}:{115+4*e}]"
            a(f"v_mfma_f32_16x16x32_bf16 v[{112+4*e}:{115+4*e}], v[{32+4*u}:{35+4*u}], v[{vb+4*e}:{vb+4*e+3}], {c}")
    for u in range(8):
        thr = 65536 + (u+1)*8192
        a("ds_read_b32 v20, v15 offset:4")
        a("s_waitcnt lgkmcnt(0)")
        if u > 0: v_mfma(u-1)
        a(f"v_cmp_gt_i32 vcc, {thr}, v20")
        a(f"s_cbranch_vccz L_vw{u}_done")
        lds_wait_ge(f"L_vw{u}", "v15", 4, "v20", thr, sleep=(1 if u < 6 else 0))
        if u == 7: stamp(6)
        vb = 96 + (u & 1)*8
        for e in range(2):
            a(f"ds_read_b64_tr_b16 v[{vb+4*e}:{vb+4*e+1}], v{13+e} offset:{u*8192}")
            a(f"ds_read_b64_tr_b16 v[{vb+4*e+2}:{vb+4*e+3}], v{13+e} offset:{u*8192+1024}")
    a("s_waitcnt lgkmcnt(2)")
    a("v_mfma_f32_16x16x32_bf16 v[112:115], v[60:63], v[104:107], v[112:115]")
    a("s_waitcnt lgkmcnt(0)")
    a("v_mfma_f32_16x16x32_bf16 v[116:119], v[60:63], v[108:111], v[116:119]")
    a("s_cmp_eq_u32 s34, 2")
    a("s_mov_b32 s47, 0x20000")
    a("s_nop 4")
    a("v_bfi_b32 v122, s36, v2, v112")
    a("v_bfi_b32 v123, s36, v1, v116")
    a("s_cbranch_scc0 L_oslow")
    a("buffer_store_dwordx2 v[122:123], v23, s[40:43], s28 offen")
    a("s_branch L_opub")
    a.label("L_oslow")
    a("buffer_store_dwordx2 v[122:123], v23, s[40:43], s28 offen sc1")
    a.label("L_opub")
    stamp(7)
    LA, LB, R = 64, 48, 32
    def oxl(base):
        for k in range(2):
            a(f"buffer_load_dwordx4 v[{base+4*k}:{base+3+4*k}], v24, s[40:43], {oxs[k]} offen sc1")
    def oxc(base, pend):
        for k in range(2):
            b0 = base + 4*k
            a(f"s_waitcnt vmcnt({pend + 1 - k})")
            for j in range(4):
                a(f"v_xor_b32 v{R+4*k+j}, s{88+j}, v{b0+j}")
            if k == 0:
                a(f"v_or3_b32 v40, v{R}, v{R+1}, v{R+2}")
            else:
                a(f"v_or3_b32 v40, v40, v{R+3}, v{R+4}")
                a(f"v_or3_b32 v41, v{R+5}, v{R+6}, v{R+7}")
        a("v_bitop3_b32 v40, v40, v41, s36 bitop3:0xa8")
        a("v_cmp_ne_u32 vcc, 0, v40")
        a("s_mov_b64 exec, vcc")
    if cfg.ovl:
        oxl(LA)
        oxc(LA, 0)
        a("s_cbranch_vccz L_ox_done")
        oxl(LA)
        a.label("L_oxpoll")
        oxl(LB)
        oxc(LA, 2)
        a("s_cbranch_vccz L_ox_done")
        oxl(LA)
        oxc(LB, 2)
        a("s_cbranch_vccz L_ox_done")
        a("s_sub_u32 s47, s47, 1")
        a("s_cbranch_scc0 L_oxpoll")
    else:
        a.label("L_oxpoll")
        oxl(LA)
        a("s_sub_u32 s47, s47, 1")
        a("s_cbranch_scc1 L_ox_done")
        oxc(LA, 0)
        a("s_cbranch_vccnz L_oxpoll")
    a.label("L_ox_done")
    a("s_mov_b64 exec, -1")
    a("ds_read_b32 v20, v15 offset:8")
    a("ds_read2_b32 v[96:97], v25 offset0:0 offset1:2")
    def gf_store():
        a("s_cmp_lg_u32 s25, 0")
        a("s_cbranch_scc1 L_nogf")
        a("s_mov_b64 exec, 1")
        a(f"buffer_store_dwordx2 v[18:19], v22, s[40:43], s30 offen {cfg.gfs}")
        a("s_mov_b64 exec, -1")
        a.label("L_nogf")
    if cfg.gpos == 0: gf_store()
    stamp(8)
    a("ds_read_b32 v21, v15 offset:4")
    wo_reads()
    a("s_mov_b32 s47, 0x100000")
    a("s_waitcnt lgkmcnt(9)" if not cfg.stamps else "s_waitcnt lgkmcnt(0)")
    a("v_cmp_eq_u32 vcc, 0, v20")
    a("s_cbranch_vccz L_wok")
    lds_wait_ge("L_ww", "v15", 8, "v20", 1, sleep=0)
    a("ds_read2_b32 v[96:97], v25 offset0:0 offset1:2")
    a("s_waitcnt lgkmcnt(0)")
    a.label("L_wok")
    for k in range(4): a(f"v_mul_f32 v{32+k}, v{32+k}, v96")
    for k in range(4): a(f"v_mul_f32 v{36+k}, v{36+k}, v97")
    a("v_permlane32_swap_b32 v32, v34")
    a("v_permlane32_swap_b32 v33, v35")
    a("v_permlane32_swap_b32 v36, v38")
    a("v_permlane32_swap_b32 v37, v39")
    a("v_add_f32 v32, v32, v34")
    a("v_add_f32 v33, v33, v35")
    a("v_add_f32 v36, v36, v38")
    a("v_add_f32 v37, v37, v39")
    a("v_permlane16_swap_b32 v32, v33")
    a("s_nop 0")
    a("v_permlane16_swap_b32 v36, v37")
    a("v_add_f32 v33, v32, v33")
    a("v_add_f32 v36, v36, v37")
    a("s_nop 0")
    a("v_add_f32_dpp v32, v33, v33 row_ror:8 row_mask:0xf bank_mask:0x3")
    a("v_add_f32_dpp v32, v36, v36 row_ror:8 row_mask:0xf bank_mask:0xc")
    a("s_nop 1")
    a("v_add_f32_dpp v33, v32, v32 row_shl:4 row_mask:0xf bank_mask:0x5")
    a("v_add_f32_dpp v33, v32, v32 row_shr:4 row_mask:0xf bank_mask:0xa")
    a("v_cvt_pk_bf16_f32 v32, v33, v33")
    a("ds_write_b16 v26, v32")
    a("ds_write_b32 v30, v27 offset:32")
    if cfg.gpos == 1: gf_store()
    a("s_waitcnt lgkmcnt(2)")
    a(f"v_cmp_gt_i32 vcc, {TOTAL}, v21")
    a("s_cbranch_vccz L_ow")
    lds_wait_ge("L_wow", "v15", 4, "v21", TOTAL, sleep=0)
    wo_reads()
    a.label("L_ow")
    a("ds_read_b128 v[108:111], v15 offset:32")
    a("ds_read_b128 v[100:103], v28")
    a("ds_read_b128 v[104:107], v28 offset:64")
    a("s_sub_u32 s47, s47, 1")
    a("s_cbranch_scc1 L_ow_done")
    a("s_waitcnt lgkmcnt(2)")
    a("v_bitop3_b32 v20, v108, v109, v110 bitop3:0x80")
    a("v_and_b32 v20, v20, v111")
    a("v_cmp_eq_u32 vcc, 0, v20")
    a("s_cbranch_vccnz L_ow")
    a.label("L_ow_done")
    if cfg.gpos == 2: gf_store()
    a("s_waitcnt lgkmcnt(1)")
    a("v_mfma_f32_16x16x32_bf16 v[112:115], v[100:103], v[80:83], 0")
    a("v_mfma_f32_16x16x32_bf16 v[116:119], v[100:103], v[88:91], 0")
    a("s_waitcnt lgkmcnt(0)")
    a("v_mfma_f32_16x16x32_bf16 v[112:115], v[104:107], v[84:87], v[112:115]")
    a("v_mfma_f32_16x16x32_bf16 v[116:119], v[104:107], v[92:95], v[116:119]")
    a("s_nop 6")
    a("v_mov_b32_dpp v112, v113 quad_perm:[0,1,2,3] row_mask:0x4 bank_mask:0xf")
    a("v_mov_b32_dpp v112, v116 quad_perm:[0,1,2,3] row_mask:0x2 bank_mask:0xf")
    a("v_mov_b32_dpp v112, v117 quad_perm:[0,1,2,3] row_mask:0x8 bank_mask:0xf")
    a("v_bfi_b32 v120, s53, v31, v112")
    a(f"buffer_store_dwordx2 v[120:121], v29, s[40:43], s31 offen {cfg.fxs}")
    if cfg.gpos == 3: gf_store()
    if cfg.wb:
        a("s_lshl_b32 s3, s22, 2")
        a("s_add_u32 s3, s3, s25")
        a("s_cmp_lg_u32 s3, 3")
        a("s_cbranch_scc1 L_end")
        a("buffer_wbl2 sc1")
    stamp(9)
    if cfg.stamps and cfg.nocst: a("s_sleep 60")
    write_stamps(10)
    a.label("L_end")
    a("s_endpgm")
    return wrap(a.text(), 256, BLOCK, LDS_BYTES, 128)
```

```python
import re, sys
import gen17 as G
from build import build
src = G.gen(G.Cfg(gpos=1))
src = src.replace("s_mov_b32 s47, 0x100000", "s_mov_b32 s47, 0x1000000").replace("s_mov_b32 s47, 0x20000", "s_mov_b32 s47, 0x200000").replace("s_cmp_lt_u32 s47, 0x20000", "s_cmp_lt_u32 s47, 0x100000")
ref = open("standalone__sliding_block_cached__decode.s.ref").read().split("\n")
hdr = [l for l in ref[:9]]
doc = """;
; Sliding-window GQA decode (q = x@wq, softmax(q K^T) V over the last 4096 keys, out = o@wo) in ONE launch.
; 256 workgroups (one per CU), wg = r*8+g: kv head g, batch b = r>>4, key split s = r&15 (256 keys).
; 6 waves per workgroup:
;   wave 0  q-projection partial (128 rows x 64 cols of wq, MFMA), exchange of q, later the split-combine weights
;   wave 1  loader: K, V, wo slice -> LDS by LDS-DMA (progress word in LDS), then final reducer of 4 outputs
;   wave 2-5 QK^T, softmax (true max of the split, flash-decoding combine), PV, split combine, out-projection
; Hand-offs between workgroups go through d_ws as self-validating words: every datum carries tag bits of a
; per-launch epoch (old epoch word in d_ws + constant; written back at the end), tags are stripped before use.
; Inside a kv-head group plain stores (shared L2) are used only after the group has verified at run time
; (exchanged XCC ids) that all its workgroups sit on one XCD; otherwise write-through (sc1) stores are used.
; All spins are bounded.""".split("\n")
lines = src.split("\n")
assert lines[0].startswith("; @launch")
notes = {
 "L_qstart:": "; ---- wave 0: LDS flag init, x fragments, wq slice -> LDS",
 "L_loader:": "; ---- wave 1: stream K, V, wo into LDS; publish progress; final reduction",
 "L_gate:": "; wait (uncached scalar poll, hint only) until every group has combined its splits",
 "L_fpoll:": "; gather the 64 partial outputs (tag-checked)",
 "L_qrest:": "; ---- wave 0 continued: q partial MFMA, publish, gather q, combine weights",
 "L_qpoll:": "; gather q partials of this (g,b) + XCC ids of the group",
 "L_mlpoll:": "; gather (max, sum) of all splits of this workgroup's out-projection head",
 "L_compute:": "; ---- waves 2..5",
 "L_mw:": "; exchange per-wave maxima through LDS",
 "L_pw:": "; all P tiles written",
 "L_oxpoll:": "; gather O partials of the 32 splits (two polls in flight)",
 "L_ow:": "; exchange combined o (bf16) through LDS, out-projection MFMA",
}
out = []
for l in lines[1:]:
    if l in notes: out.append(notes[l])
    out.append(l)
txt = "\n".join(hdr + doc + [lines[0]] + out)
dst = "standalone__sliding_block_cached__decode.s"
open(dst, "w").write(txt)
open("final.s", "w").write(txt)
build("final.s")
```

```python
import sys, math, struct
from asmlib import *
from build import build

L_K = 0x00000
L_V = 0x10000
L_W = 0x20000
L_Q = 0x24000
L_P = 0x24600
L_MX = 0x25000
L_FL = L_MX + 64
L_O = 0x25100
L_WT = 0x25300
LDS_BYTES = 0x25700
BLOCK = 384
W_EP = 0x000000
W_GF = 0x008000
W_ML = 0x010000
W_QA = 0x080000
W_QB = 0x100000
XI = 0x40000
W_OX = 0x180000
OXS = 2048 + 128
W_FX = 0x290000
FXS = 2048 + 128
WS_BYTES = 0x320000
SCALE = (128 ** -0.5) * math.log2(math.e)
EPC_LO = 0x9E3779B9
EPC_HI = 0x7F4A7C15
TOTAL = 131072 + 16384
def f2u(f): return struct.unpack("<I", struct.pack("<f", f))[0]

class Cfg:
    stamps = False
    minst = False
    nocst = True
    pol = "nt"
    wpol = "nt"
    mo1 = 24
    mo2 = 44
    sw = 104
    trig = 36
    fast = True
    oxpf = 0
    oxpfl = "sc1"
    mlpref = True
    cwarm = True
    gate = True
    pure = 0
    tight = False
    half = True
    gat = False
    gall = 0
    sel1 = True
    fsl = 0
    gvec = False
    one = False
    sw1 = 104
    sw3 = 104
    wb = 0
    fxs = 'sc1'
    fxl = 'sc1'
    gfs = 'sc1'
    outs = ''
    ilv = 0
    gpriv = False
    gown = False
    gpos = 0
    gsl = 0
    qspf = False
    g2 = 0
    gs = 4
    rot = 0
    emu = True
    ovl = True
    osleep = 0
    mlt = 128
    mlp1 = True
    il = True
    def __init__(self, **kw):
        for k, v in kw.items():
            assert hasattr(self, k), k
            setattr(self, k, v)

def gen(cfg):
    a = Asm()
    S0 = 60
    def stamp(k):
        if cfg.stamps or (cfg.minst and k == 0):
            a(f"s_memrealtime s[{S0+2*k}:{S0+1+2*k}]")
    def write_stamps(n, force=False):
        if not cfg.stamps and not force: return
        a("s_waitcnt lgkmcnt(0)")
        a("s_lshl_b32 s56, s2, 4")
        a("s_add_u32 s56, s56, s20")
        a("s_lshl_b32 s56, s56, 8")
        a(f"s_add_u32 s56, s56, {STAMP_OFF}")
        a("s_add_u32 s56, s18, s56")
        a("s_addc_u32 s57, s19, 0")
        a("s_mov_b64 exec, 1")
        a("v_mov_b32 v2, 0")
        for k in range(n):
            a(f"v_mov_b32 v0, s{S0+2*k}")
            a(f"v_mov_b32 v1, s{S0+1+2*k}")
            a(f"global_store_dwordx2 v2, v[0:1], s[56:57] offset:{8*k}")
            a("s_nop 1")
    def ws_srd():
        a("s_mov_b32 s40, s18"); a("s_mov_b32 s41, s19"); a(f"s_mov_b32 s42, {WS_BYTES}"); a("s_mov_b32 s43, 0x20000")
    def epoch_load():
        a(f"s_load_dwordx2 s[50:51], s[18:19], {W_EP}")
    def epoch_fix():
        a(f"s_add_u32 s50, s50, {EPC_LO:#x}")
        a(f"s_addc_u32 s51, s51, {EPC_HI:#x}")
        a("s_and_b32 s52, s51, 0xff")
        a("s_movk_i32 s53, 0xff")
    def lds_wait_ge(name, vaddr, off, vt, thr, cnt="s47", sleep=1):
        a.label(name)
        a(f"ds_read_b32 {vt}, {vaddr} offset:{off}")
        a(f"s_sub_u32 {cnt}, {cnt}, 1")
        a(f"s_cbranch_scc1 {name}_done")
        a("s_waitcnt lgkmcnt(0)")
        a(f"v_cmp_gt_i32 vcc, {thr}, {vt}")
        a(f"s_cbranch_vccz {name}_done")
        if sleep: a(f"s_sleep {sleep}")
        a(f"s_branch {name}")
        a.label(f"{name}_done")
    def pflag_wait(name, vaddr, r0, vt, sleep=0):
        a.label(name)
        a(f"ds_read_b128 v[{r0}:{r0+3}], {vaddr} offset:16")
        a("s_sub_u32 s47, s47, 1")
        a(f"s_cbranch_scc1 {name}_done")
        a("s_waitcnt lgkmcnt(0)")
        a(f"v_bitop3_b32 {vt}, v{r0}, v{r0+1}, v{r0+2} bitop3:0x80")
        a(f"v_and_b32 {vt}, {vt}, v{r0+3}")
        a(f"v_cmp_eq_u32 vcc, 0, {vt}")
        if sleep: a(f"s_sleep {sleep}")
        a(f"s_cbranch_vccnz {name}")
        a.label(f"{name}_done")
    def chk4(lo, hi, b0, first):
        a(f"v_xor_b32 v{b0}, s52, v{b0}")
        a(f"v_xor_b32 v{b0+2}, s52, v{b0+2}")
        if first:
            a(f"v_bitop3_b32 {hi}, v{b0+1}, v{b0+3}, s50 bitop3:0x7e")
            a(f"v_or_b32 {lo}, v{b0}, v{b0+2}")
        else:
            a(f"v_bitop3_b32 {hi}, {hi}, v{b0+1}, s50 bitop3:0xf6")
            a(f"v_or3_b32 {lo}, {lo}, v{b0}, v{b0+2}")
            a(f"v_bitop3_b32 {hi}, {hi}, v{b0+3}, s50 bitop3:0xf6")
    def chk_end(lo, hi):
        a(f"v_and_or_b32 {lo}, {lo}, s53, {hi}")
        a(f"v_cmp_ne_u32 vcc, 0, {lo}")

    a.label("L_start")
    stamp(0)
    a("s_cmp_ge_u32 s2, 256")
    a("s_cbranch_scc1 L_end")
    a("s_load_dwordx16 s[4:19], s[0:1], 0")
    a("v_lshrrev_b32 v1, 6, v0")
    a("v_and_b32 v0, 63, v0")
    a("s_and_b32 s21, s2, 7")
    a("v_readfirstlane_b32 s20, v1")
    a("s_lshr_b32 s22, s2, 3")
    a("s_lshr_b32 s23, s22, 4")
    a("s_and_b32 s24, s22, 15")
    a("v_and_b32 v1, 15, v0")
    a("v_lshrrev_b32 v2, 4, v0")
    a("s_cmp_eq_u32 s20, 1")
    a("s_cbranch_scc1 L_loader")
    a("s_cmp_eq_u32 s20, 0")
    a("s_cbranch_scc1 L_qstart")
    if cfg.cwarm:
        a("s_getpc_b64 s[36:37]")
        a.label("L_pc")
        a("s_and_b32 s3, s22, 3")
        a("s_lshl_b32 s3, s3, 2")
        a("s_add_u32 s3, s3, s20")
        a("s_lshl_b32 s3, s3, 10")
        a("s_sub_u32 s3, s3, 2048")
        a("v_lshl_add_u32 v20, v0, 4, s3")
        a("v_min_u32 v20, L_end - L_pc - 16, v20")
        a("global_load_dword v32, v20, s[36:37]")
    a("s_barrier")
    a("s_branch L_compute")

    a.label("L_qstart")
    a("v_lshlrev_b32 v3, 2, v0")
    a(f"v_add_u32 v3, {L_MX}, v3")
    a("v_cmp_gt_u32 vcc, 16, v0")
    a("s_lshr_b32 s25, s22, 3")
    a("s_and_b32 s26, s22, 7")
    a("v_cndmask_b32_e64 v4, 0, -1, vcc")
    a("ds_write_b32 v3, v4")
    a("v_and_b32 v3, 1, v0")
    a("v_lshlrev_b32 v3, 10, v3")
    a("v_lshl_add_u32 v3, v2, 4, v3")
    a("s_lshl_b32 s27, s25, 8")
    a("v_add_u32 v3, s27, v3")
    a("v_and_b32 v4, 7, v0")
    a("v_and_b32 v5, 1, v2")
    a("v_lshlrev_b32 v5, 1, v5")
    a("v_xor_b32 v4, v4, v5")
    a("v_lshlrev_b32 v4, 4, v4")
    a("v_lshrrev_b32 v5, 3, v0")
    a("v_lshl_add_u32 v4, v5, 13, v4")
    a("v_xor_b32 v5, 64, v4")
    a(f"v_add_u32 v5, {65536 - 1024}, v5")
    a("s_lshl_b32 s27, s25, 20")
    a("s_lshl_b32 s3, s21, 10")
    a("s_add_u32 s27, s27, s3")
    a("s_lshl_b32 s3, s26, 7")
    a("s_add_u32 s27, s27, s3")
    a(f"s_sub_u32 s30, {512*8192}, s27")
    a("s_mov_b32 s31, 0x20000")
    a(f"s_mov_b32 m0, {L_W}")
    a("s_mov_b32 s3, 0")
    a("s_waitcnt lgkmcnt(0)")
    stamp(1)
    a("s_add_u32 s28, s10, s27"); a("s_addc_u32 s29, s11, 0")
    for st in range(4):
        a(f"global_load_dwordx4 v[{8+4*st}:{11+4*st}], v3, s[4:5] offset:{st*64}")
    a.label("L_wql")
    a(f"buffer_load_dwordx4 v4, s[28:31], s3 offen {cfg.wpol} lds")
    a(f"buffer_load_dwordx4 v5, s[28:31], s3 offen offset:1024 {cfg.wpol} lds")
    a("s_add_u32 m0, m0, 2048")
    a("s_add_u32 s3, s3, 0x20000")
    a("s_cmp_lt_u32 s3, 0x100000")
    a("s_cbranch_scc1 L_wql")
    a("s_barrier")
    a("s_branch L_qrest")

    a.label("L_loader")
    a("v_xor_b32 v3, v1, v2")
    a("v_lshlrev_b32 v3, 4, v3")
    a("v_lshl_add_u32 v4, v2, 8, v3")
    for i in range(1, 4): a(f"v_xor_b32 v{4+i}, {i*64}, v4")
    a(f"v_mov_b32 v11, {L_FL}")
    a("s_lshl_b32 s25, s23, 3")
    a("s_add_u32 s25, s25, s21")
    a("s_lshl_b32 s25, s25, 23")
    if not cfg.ilv:
        a("s_lshl_b32 s26, s24, 16")
        a("s_add_u32 s25, s25, s26")
    a(f"s_add_u32 s25, s25, {28672*256}")
    if cfg.ilv == 2:
        a("s_lshl_b32 s45, s23, 3"); a("s_add_u32 s45, s45, s21"); a("s_lshl_b32 s45, s45, 16")
        a("s_lshl_b32 s46, s24, 12"); a("s_add_u32 s45, s45, s46")
    elif cfg.rot == 0:
        a("s_lshl_b32 s45, s24, 12")
    elif cfg.rot == 1:
        a("s_lshl_b32 s45, s21, 1"); a("s_add_u32 s45, s45, s24"); a("s_and_b32 s45, s45, 15"); a("s_lshl_b32 s45, s45, 12")
    elif cfg.rot == 2:
        a("s_mul_i32 s45, s2, 5"); a("s_and_b32 s45, s45, 15"); a("s_lshl_b32 s45, s45, 12")
    elif cfg.rot == 3:
        a("s_mov_b32 s45, 0")
    elif cfg.rot == 4:
        a("s_mul_i32 s45, s24, 7"); a("s_mul_i32 s46, s21, 3"); a("s_add_u32 s45, s45, s46"); a("s_lshl_b32 s46, s23, 3"); a("s_add_u32 s45, s45, s46"); a("s_and_b32 s45, s45, 15"); a("s_lshl_b32 s45, s45, 12")
    elif cfg.rot == 5:
        a("s_lshr_b32 s45, s22, 1"); a("s_lshl_b32 s45, s45, 12")
    a("s_mov_b32 s48, 0")
    a(f"s_mov_b32 s30, {0x100000 if cfg.ilv else 0x10000}"); a("s_mov_b32 s31, 0x20000")
    a(f"s_mov_b32 m0, {L_K}")
    a("s_waitcnt lgkmcnt(0)")
    a("s_add_u32 s28, s6, s25"); a("s_addc_u32 s29, s7, 0")
    a("s_barrier")
    stamp(1)
    def sloop(name, end, srd, vf, mo):
        a.label(name)
        a(f"s_waitcnt vmcnt({mo-4})")
        a(f"s_add_i32 s46, m0, {-(mo-4)*1024}")
        a("s_max_i32 s48, s48, s46")
        a("v_mov_b32 v12, s48")
        a("ds_write_b32 v11, v12 offset:4")
        for i in range(4):
            a(f"buffer_load_dwordx4 v{vf(i)}, {srd}, s45 offen offset:{i*1024} {cfg.pol} lds")
        a(f"s_add_u32 s45, s45, {65536 if cfg.ilv else 4096}")
        a(f"s_and_b32 s45, s45, {0xfffff if cfg.ilv else 0xffff}")
        a("s_add_u32 m0, m0, 4096")
        a(f"s_cmp_lt_u32 m0, {end}")
        a(f"s_cbranch_scc1 {name}")
    kf = lambda i: 4+i
    vf = lambda i: 8+(i>>1)
    sloop("L_l1", L_V, "s[28:31]", kf, cfg.mo1)
    stamp(2)
    a("v_lshlrev_b32 v3, 1, v2")
    a("v_xor_b32 v3, v1, v3")
    a("v_lshlrev_b32 v3, 4, v3")
    a("v_lshl_add_u32 v8, v2, 8, v3")
    a("v_xor_b32 v9, 0x80, v8")
    a("s_add_u32 s32, s8, s25"); a("s_addc_u32 s33, s9, 0"); a(f"s_mov_b32 s34, {0x100000 if cfg.ilv else 0x10000}"); a("s_mov_b32 s35, 0x20000")
    epoch_load()
    if cfg.gat:
        a("s_lshl_b32 s27, s22, 7")
        a(f"s_add_u32 s27, s27, {W_GF}")
        a("s_add_u32 s58, s18, s27")
        a("s_addc_u32 s59, s19, 0")
        a("s_load_dword s82, s[58:59], 0 glc")
    cuts = sorted(set([c for c in (cfg.sw - 64, cfg.oxpf) if 0 < c < 64] + [64]))
    for ci, c in enumerate(cuts):
        if ci == 0:
            a(f"s_mov_b32 s49, {cfg.sw*1024}")
            a("s_and_b32 s3, s22, 3")
            a("s_cmp_eq_u32 s3, 1")
            a(f"s_cselect_b32 s49, {cfg.sw1*1024}, s49")
            a("s_and_b32 s3, s22, 7")
            a("s_cmp_eq_u32 s3, 3")
            a(f"s_cselect_b32 s49, {cfg.sw3*1024}, s49")
        sloop(f"L_lv{ci}", "s49" if ci == 0 else L_V + c*1024, "s[32:35]", vf, cfg.mo1 if c <= cfg.sw - 64 else cfg.mo2)
        if ci == 0:
            ws_srd()
            a("s_lshl_b32 s44, s21, 5")
            a("s_add_u32 s44, s44, s22")
            a("v_lshl_add_u32 v10, v2, 10, v3")
            a("v_xor_b32 v15, 0x80, v10")
            a("s_lshl_b32 s26, s21, 19")
            a("s_lshr_b32 s27, s22, 2")
            a("s_lshl_b32 s27, s27, 16")
            a("s_add_u32 s26, s26, s27")
            a("s_and_b32 s27, s22, 3")
            a("s_lshl_b32 s27, s27, 8")
            a("s_add_u32 s26, s26, s27")
            a("s_add_u32 s36, s12, s26"); a("s_addc_u32 s37, s13, 0"); a(f"s_sub_u32 s38, {4096*1024}, s26"); a("s_mov_b32 s39, 0x20000")
        if c == cfg.oxpf:
            a(f"s_mul_i32 s3, s44, {OXS}")
            a(f"s_add_u32 s3, s3, {W_OX}")
            a("v_lshlrev_b32 v13, 7, v0")
            a("s_mov_b32 exec_hi, 0")
            a(f"buffer_load_dword v24, v13, s[40:43], s3 offen {cfg.oxpfl}")
            a("s_mov_b32 exec_hi, -1")
    stamp(3)
    a("s_mov_b32 s47, 0x100000")
    lds_wait_ge("L_wqc", "v11", 12, "v13", 1, sleep=0)
    a("s_waitcnt lgkmcnt(0)")
    epoch_fix()
    mo = cfg.mo2
    for i in range(16):
        if i % 4 == 0:
            a(f"s_waitcnt vmcnt({mo-4})")
            a(f"s_max_i32 s48, s48, {131072 + i*1024 - (mo-4)*1024}")
            a("v_mov_b32 v12, s48")
            a("ds_write_b32 v11, v12 offset:4")
        a(f"s_mov_b32 m0, {L_W + i*1024}")
        a(f"s_mov_b32 s3, {i*4096}")
        a(f"buffer_load_dwordx4 v{15 if (i>>1)&1 else 10}, s[36:39], s3 offen {cfg.wpol} lds")
    stamp(4)
    for n in (56, 48, 40, 32, 24, 16, 0):
        if n >= mo: continue
        a(f"v_mov_b32 v12, {TOTAL - n*1024}")
        a(f"s_waitcnt vmcnt({n})")
        a("ds_write_b32 v11, v12 offset:4")
        if n == 16: stamp(6)
    stamp(5)
    if cfg.pure:
        write_stamps(7)
        a("s_endpgm")
    a("v_lshrrev_b32 v14, 1, v0")
    a(f"v_mul_u32_u24 v14, {FXS}, v14")
    a("v_and_b32 v13, 1, v0")
    a("v_lshl_add_u32 v14, v13, 4, v14")
    a("s_lshr_b32 s26, s21, 1")
    a(f"s_mul_i32 s3, s26, {64*FXS}")
    a("s_and_b32 s27, s44, 63")
    a("s_lshl_b32 s27, s27, 5")
    a("s_add_u32 s3, s3, s27")
    a(f"s_add_u32 s3, s3, {W_FX}")
    a(f"s_add_u32 s46, s3, {32*FXS}")
    a("s_and_b32 s49, s21, 1")
    a("s_lshl_b32 s49, s49, 10")
    a("s_lshl_b32 s26, s26, 8")
    a("s_add_u32 s49, s49, s26")
    a("s_lshl_b32 s26, s22, 3")
    a("s_add_u32 s49, s49, s26")
    a("v_lshlrev_b32 v3, 2, v13")
    a("v_lshrrev_b32 v4, 5, v0")
    a("v_lshl_add_u32 v3, v4, 1, v3")
    a("v_add_u32 v3, s49, v3")
    a(f"s_lshl_b32 s27, {'s2' if cfg.gpriv else 's22'}, 7")
    a(f"s_add_u32 s27, s27, {W_GF}")
    a("s_add_u32 s58, s18, s27")
    a("s_addc_u32 s59, s19, 0")
    a("s_mov_b32 s47, 0x20000")
    F = 84
    if cfg.gown:
        a("s_mov_b32 s47, 0x100000")
        lds_wait_ge("L_gown", "v11", 32, "v12", 1, sleep=1)
        a("s_mov_b32 s47, 0x20000")
    if cfg.gvec:
        a("v_and_b32 v24, 7, v0")
        a("v_lshlrev_b32 v24, 3, v24")
        a("s_mov_b64 exec, 0xff")
        a.label("L_gv")
        a("buffer_load_dwordx2 v[26:27], v24, s[40:43], s27 offen sc1")
        a("s_sub_u32 s47, s47, 1")
        a("s_cbranch_scc1 L_gv_done")
        a("s_waitcnt vmcnt(0)")
        a("v_cmp_ne_u64 vcc, s[50:51], v[26:27]")
        a("s_cbranch_vccnz L_gv")
        a.label("L_gv_done")
        a("s_mov_b64 exec, -1")
    if cfg.gat:
        a("s_add_u32 s82, s82, 8")
        a("s_mov_b32 s83, 64")
        a.label("L_ga")
        a("s_load_dword s84, s[58:59], 0 glc")
        a("s_sub_u32 s83, s83, 1")
        a("s_cbranch_scc1 L_ga_done")
        a("s_waitcnt lgkmcnt(0)")
        a("s_cmp_lg_u32 s84, s82")
        a("s_cbranch_scc1 L_ga")
        a.label("L_ga_done")
    if cfg.gate and not cfg.g2 and not cfg.gvec and not cfg.gat:
        a("s_branch L_gate1")
        a.label("L_gate")
        if cfg.gsl: a(f"s_sleep {cfg.gsl}")
        a.label("L_gate1")
        a(f"s_load_dwordx16 s[{F}:{F+15}], s[58:59], 0 glc")
        a("s_sub_u32 s47, s47, 1")
        a("s_cbranch_scc1 L_gate_done")
        a("s_waitcnt lgkmcnt(0)")
        for k in range(8):
            a(f"s_cmp_lg_u64 s[{F+2*k}:{F+2*k+1}], s[50:51]")
            a("s_cbranch_scc1 L_gate")
        a.label("L_gate_done")
        stamp(7)
    if cfg.gate and cfg.g2:
        F2 = 22 - 2
        FA, FB = 84, 64
        assert not cfg.stamps
        a("s_waitcnt lgkmcnt(0)")
        a(f"s_load_dwordx16 s[{FA}:{FA+15}], s[58:59], 0 glc")
        a(f"s_sleep {cfg.gs}")
        a.label("L_gate")
        a(f"s_load_dwordx16 s[{FB}:{FB+15}], s[58:59], 0 glc")
        a("s_sub_u32 s47, s47, 1")
        a("s_cbranch_scc1 L_gate_done")
        a(f"s_waitcnt lgkmcnt({cfg.g2})")
        for k in range(8):
            a(f"s_cmp_lg_u64 s[{FA+2*k}:{FA+2*k+1}], s[50:51]")
            a("s_cbranch_scc1 L_gateb")
        a("s_branch L_gate_done")
        a.label("L_gateb")
        a(f"s_load_dwordx16 s[{FA}:{FA+15}], s[58:59], 0 glc")
        a(f"s_waitcnt lgkmcnt({cfg.g2})")
        for k in range(8):
            a(f"s_cmp_lg_u64 s[{FB+2*k}:{FB+2*k+1}], s[50:51]")
            a("s_cbranch_scc1 L_gate")
        a.label("L_gate_done")
    a.label("L_fpoll")
    a(f"buffer_load_dwordx4 v[16:19], v14, s[40:43], s3 offen {cfg.fxl}")
    a(f"buffer_load_dwordx4 v[20:23], v14, s[40:43], s46 offen {cfg.fxl}")
    a("s_sub_u32 s47, s47, 1")
    a("s_cbranch_scc1 L_fpoll_done")
    a("s_waitcnt vmcnt(1)")
    chk4("v12", "v13", 16, True)
    a("s_waitcnt vmcnt(0)")
    chk4("v12", "v13", 20, False)
    chk_end("v12", "v13")
    a("s_mov_b64 exec, vcc")
    if cfg.fsl:
        a("s_cbranch_vccz L_fpoll_done")
        a(f"s_sleep {cfg.fsl}")
        a("s_branch L_fpoll")
    else:
        a("s_cbranch_vccnz L_fpoll")
    a.label("L_fpoll_done")
    a("s_mov_b64 exec, -1")
    stamp(8)
    a("v_add_f32 v16, v16, v20")
    a("v_add_f32 v18, v18, v22")
    a("s_nop 1")
    a("v_permlane32_swap_b32 v16, v18")
    a("v_add_f32 v16, v16, v18")
    a("v_mov_b32 v18, v16")
    a("s_nop 1")
    a("v_permlane16_swap_b32 v16, v18")
    a("v_add_f32 v16, v16, v18")
    for ctl in ("quad_perm:[2,3,0,1]", "row_ror:4", "row_ror:8"):
        a("s_nop 1")
        a(f"v_add_f32_dpp v16, v16, v16 {ctl} row_mask:0xf bank_mask:0xf")
    a("s_mov_b32 exec_lo, 3")
    a("v_cvt_pk_bf16_f32 v16, v16, v16")
    a("s_mov_b32 exec_hi, 3")
    a(f"global_store_short v3, v16, s[14:15] {cfg.outs}")
    a("s_cmp_lg_u32 s2, 0")
    a("s_cbranch_scc1 L_noep")
    a("s_mov_b64 exec, 1")
    a("v_mov_b32 v4, s50")
    a("v_mov_b32 v5, s51")
    a(f"v_mov_b32 v3, {W_EP}")
    a("global_store_dwordx2 v3, v[4:5], s[18:19]")
    a.label("L_noep")
    stamp(9)
    write_stamps(10)
    if cfg.minst:
        a("s_memrealtime s[62:63]")
        write_stamps(2, True)
    a("s_endpgm")

    a.label("L_qrest")
    a("s_setprio 3")
    epoch_load()
    stamp(2)
    ws_srd()
    a("s_lshl_b32 s44, s21, 5")
    a("s_add_u32 s44, s44, s22")
    a("s_lshl_b32 s48, s21, 15")
    a("s_lshl_b32 s3, s25, 12")
    a("s_add_u32 s48, s48, s3")
    a("s_lshl_b32 s3, s26, 9")
    a("s_add_u32 s48, s48, s3")
    a("s_lshl_b32 s49, s44, 3")
    a(f"s_add_u32 s49, s49, {XI}")
    a("v_lshlrev_b32 v90, 3, v0")
    if cfg.qspf:
        a(f"s_add_u32 s58, s48, {W_QA}")
        a("s_add_u32 s58, s18, s58")
        a("s_addc_u32 s59, s19, 0")
        for bb in range(2):
            for k in range(4):
                a(f"s_load_dword s{84+bb*4+k}, s[58:59], {bb*16384 + k*128}")
    a("s_getreg_b32 s54, hwreg(HW_REG_XCC_ID)")
    a("s_and_b32 s54, s54, 15")
    a("s_lshl_b32 s54, s54, 8")
    a("v_lshrrev_b32 v6, 2, v1")
    a("v_lshl_add_u32 v6, v2, 3, v6")
    a("v_lshlrev_b32 v6, 7, v6")
    a("v_and_b32 v7, 3, v0")
    a("v_lshl_add_u32 v6, v7, 3, v6")
    a("v_lshrrev_b32 v7, 3, v1")
    a("v_and_b32 v28, 1, v2")
    a("v_lshl_or_b32 v7, v28, 1, v7")
    a("v_lshl_add_u32 v6, v7, 5, v6")
    a(f"v_add_u32 v28, {L_W}, v6")
    for nt in range(1, 4):
        a(f"v_xor_b32 v{28+nt}, {nt*32}, v28")
    a("s_waitcnt lgkmcnt(0)")
    epoch_fix()
    a("s_or_b32 s55, s54, s52")
    def q_reads(st):
        a(f"s_waitcnt vmcnt({16 - 4*(st+1)}) lgkmcnt(7)")
        for nt in range(4):
            base = 32 + (st & 1)*16 + nt*4
            a(f"ds_read_b64_tr_b16 v[{base}:{base+1}], v{28+nt} offset:{st*4096}")
            a(f"ds_read_b64_tr_b16 v[{base+2}:{base+3}], v{28+nt} offset:{st*4096+512}")
    def q_mfma(st):
        for nt in range(4):
            base = 32 + (st & 1)*16 + nt*4
            c = "0" if st == 0 else f"v[{64+4*nt}:{67+4*nt}]"
            a(f"v_mfma_f32_16x16x32_bf16 v[{64+4*nt}:{67+4*nt}], v[{8+4*st}:{11+4*st}], v[{base}:{base+3}], {c}")
    q_reads(0)
    stamp(3)
    q_reads(1)
    a("s_waitcnt lgkmcnt(8)" if not cfg.stamps else "s_waitcnt lgkmcnt(0)")
    q_mfma(0)
    q_reads(2)
    a("s_waitcnt lgkmcnt(8)")
    q_mfma(1)
    q_reads(3)
    a("s_waitcnt lgkmcnt(8)")
    q_mfma(2)
    a("s_waitcnt lgkmcnt(0)")
    q_mfma(3)
    a(f"v_mov_b32 v6, {L_FL}")
    a("v_mov_b32 v7, 1")
    a("ds_write_b32 v6, v7 offset:12")
    if cfg.pure:
        a("s_waitcnt lgkmcnt(0)")
        a("s_endpgm")
    a("v_mov_b32 v81, s50")
    a("v_mov_b32 v83, s50")
    a("v_mov_b32 v85, s50")
    a("v_mov_b32 v84, s55")
    a("v_mov_b32 v86, s52")
    for nt in range(1, 4):
        for bb in range(2):
            a(f"v_mov_b32_dpp v{64+bb}, v{64+4*nt+bb} quad_perm:[0,1,2,3] row_mask:{1<<nt:#x} bank_mask:0xf")
    for bb in range(2):
        a(f"v_add_u32 v{64+bb}, 0x80, v{64+bb}")
        a(f"v_bfi_b32 v{80+2*bb}, s53, v86, v{64+bb}")
    def q_publish(base, fl):
        a(f"s_add_u32 s34, s48, {base}")
        a(f"s_add_u32 s35, s48, {base + 16384}")
        a(f"s_add_u32 s36, s49, {base}")
        a(f"buffer_store_dwordx2 v[80:81], v90, s[40:43], s34 offen {fl}")
        a(f"buffer_store_dwordx2 v[82:83], v90, s[40:43], s35 offen {fl}")
        a("s_mov_b64 exec, 1")
        a(f"buffer_store_dwordx2 v[84:85], v90, s[40:43], s36 offen {fl}")
        a("s_mov_b64 exec, -1")
    if cfg.fast: q_publish(W_QA, "")
    stamp(4)
    a("s_lshl_b32 s3, s21, 15")
    a("s_lshl_b32 s45, s23, 14")
    a("s_add_u32 s3, s3, s45")
    a(f"s_add_u32 s3, s3, {W_QA}")
    a("s_lshl_b32 s46, s21, 8")
    a(f"s_add_u32 s46, s46, {W_QA + XI}")
    a("v_lshlrev_b32 v4, 4, v0")
    a("v_lshlrev_b32 v5, 2, v0")
    a(f"v_add_u32 v5, {L_Q}, v5")
    a("v_and_b32 v3, 31, v0")
    a("v_lshlrev_b32 v3, 3, v3")
    a("s_mov_b32 s47, 0x100000")
    lds_wait_ge("L_tw", "v6", 4, "v8", cfg.trig*1024)
    stamp(5)
    a("s_mov_b32 s47, 0")
    B = 8
    a.label("L_qpoll")
    for k in range(16):
        if k % 4 == 0: a(f"s_add_u32 s45, s3, {(k//4)*4096}")
        a(f"buffer_load_dwordx4 v[{B+4*k}:{B+3+4*k}], v4, s[40:43], s45 offen offset:{(k&3)*1024} sc1")
    a("buffer_load_dwordx2 v[72:73], v3, s[40:43], s46 offen sc1")
    a("s_add_u32 s47, s47, 1")
    for k in range(16):
        a(f"s_waitcnt vmcnt({16-k})")
        chk4("v88", "v89", B+4*k, k == 0)
    a("s_waitcnt vmcnt(0)")
    a("v_xor_b32 v72, s52, v72")
    a("v_or_b32 v88, v88, v72")
    a("v_bitop3_b32 v89, v89, v73, s50 bitop3:0xf6")
    chk_end("v88", "v89")
    a("s_cbranch_vccz L_qok")
    a("s_cmp_lt_u32 s47, 4")
    a("s_cbranch_scc1 L_qpoll")
    a("s_cmp_lg_u32 s47, 4")
    a("s_cbranch_scc1 L_qnob")
    q_publish(W_QB, "sc1")
    a.label("L_qnob")
    a(f"s_xor_b32 s3, s3, {W_QA ^ W_QB}")
    a(f"s_xor_b32 s46, s46, {W_QA ^ W_QB}")
    a("s_cmp_lt_u32 s47, 0x20000")
    a("s_cbranch_scc1 L_qpoll")
    a.label("L_qok")
    stamp(6)
    for h in range(4):
        for e in range(2):
            xs = [B + 16*rb + 4*h + 2*e for rb in range(4)]
            a(f"v_add_f32 v{xs[0]}, v{xs[0]}, v{xs[1]}")
            a(f"v_add_f32 v{xs[2]}, v{xs[2]}, v{xs[3]}")
            a(f"v_add_f32 v{xs[0]}, v{xs[0]}, v{xs[2]}")
        a(f"v_cvt_pk_bf16_f32 v{76+h}, v{B+4*h}, v{B+2+4*h}")
        a(f"ds_write_b32 v5, v{76+h} offset:{h*320}")
    a("v_cmp_ne_u32 vcc, s54, v72")
    if cfg.fast:
        a("v_mov_b32 v7, 2")
        a("s_cbranch_vccz L_qfast")
    a("v_mov_b32 v7, 1")
    a("s_cmp_gt_u32 s47, 4")
    a("s_cbranch_scc1 L_qfast")
    q_publish(W_QB, "sc1")
    a.label("L_qfast")
    a("ds_write_b32 v6, v7")
    stamp(7)
    a("v_lshrrev_b32 v25, 1, v0")
    a("v_lshlrev_b32 v25, 8, v25")
    a("v_and_b32 v20, 1, v0")
    a("v_lshl_add_u32 v25, v20, 5, v25")
    a("s_lshl_b32 s30, s21, 13")
    a("s_lshl_b32 s27, s25, 6")
    a("s_add_u32 s30, s30, s27")
    a(f"s_add_u32 s30, s30, {W_ML}")
    a("v_bfe_u32 v4, v0, 1, 3")
    a("v_lshlrev_b32 v4, 4, v4")
    a("v_lshl_add_u32 v4, v2, 2, v4")
    a(f"v_add_u32 v4, {L_WT}, v4")
    a("s_mov_b32 s47, 0x100000")
    if cfg.mlp1:
        pflag_wait("L_qpw", "v6", 8, "v12", sleep=1)
        a("s_branch L_mlpoll")
    a.label("L_mlagain")
    lds_wait_ge("L_mlt", "v6", 4, "v12", cfg.mlt*1024, sleep=1)
    a.label("L_mlpoll")
    a("buffer_load_dwordx4 v[96:99], v25, s[40:43], s30 offen sc1")
    a("buffer_load_dwordx4 v[100:103], v25, s[40:43], s30 offen offset:16 sc1")
    a("s_sub_u32 s47, s47, 16")
    a("s_cbranch_scc1 L_ml_done")
    a("s_waitcnt vmcnt(0)")
    chk4("v104", "v105", 96, True)
    chk4("v104", "v105", 100, False)
    chk_end("v104", "v105")
    a("s_cbranch_vccnz L_mlagain")
    a.label("L_ml_done")
    stamp(8)
    a("v_lshrrev_b32 v100, 8, v100")
    a("v_add_f32 v98, v98, v102")
    a("v_bfi_b32 v96, s53, v100, v96")
    a("s_nop 1")
    a("v_max_f32_dpp v104, v96, v96 quad_perm:[2,3,0,1] row_mask:0xf bank_mask:0xf")
    for ctl in ("row_ror:4", "row_ror:8"):
        a("s_nop 1")
        a(f"v_max_f32_dpp v104, v104, v104 {ctl} row_mask:0xf bank_mask:0xf")
    a("v_mov_b32 v105, v104")
    a("s_nop 1")
    a("v_permlane16_swap_b32 v105, v104")
    a("v_max_f32 v104, v104, v105")
    a("v_sub_f32 v96, v96, v104")
    a("v_exp_f32 v96, v96")
    a("s_nop 0")
    a("v_mul_f32 v104, v96, v98")
    for ctl in ("quad_perm:[1,0,3,2]", "quad_perm:[2,3,0,1]", "row_ror:4", "row_ror:8"):
        a("s_nop 1")
        a(f"v_add_f32_dpp v104, v104, v104 {ctl} row_mask:0xf bank_mask:0xf")
    a("v_mov_b32 v105, v104")
    a("s_nop 1")
    a("v_permlane16_swap_b32 v105, v104")
    a("v_add_f32 v104, v104, v105")
    a("v_rcp_f32 v104, v104")
    a("s_nop 0")
    a("v_mul_f32 v104, v96, v104")
    a("ds_write_b32 v4, v104")
    a("ds_write_b32 v6, v7 offset:8")
    if cfg.gat:
        a("s_lshl_b32 s27, s22, 7")
        a(f"s_add_u32 s27, s27, {W_GF}")
        a("s_add_u32 s58, s18, s27")
        a("s_addc_u32 s59, s19, 0")
        a("s_mov_b32 s84, 1")
        a("s_mov_b32 s47, 0x100000")
        lds_wait_ge("L_ew", "v6", 48, "v12", 1, sleep=0)
        a("s_atomic_add s84, s[58:59], 0")
    stamp(9)
    if cfg.stamps and cfg.nocst: a("s_sleep 100")
    write_stamps(10)
    a("s_waitcnt lgkmcnt(0)")
    a("s_endpgm")

    a.label("L_compute")
    if cfg.pure: a("s_endpgm")
    a("s_sub_u32 s25, s20, 2")
    a(f"v_mov_b32 v15, {L_FL}")
    a("s_lshl_b32 s44, s21, 5")
    a("s_add_u32 s44, s44, s22")
    a("s_waitcnt lgkmcnt(0)")
    epoch_load()
    ws_srd()
    stamp(1)
    a("s_lshl_b32 s32, s44, 8")
    a("s_lshl_b32 s27, s25, 4")
    a("s_add_u32 s32, s32, s27")
    a(f"s_add_u32 s32, s32, {W_ML}")
    a("v_lshlrev_b32 v22, 6, v0")
    if cfg.mlpref:
        a("s_cmp_lg_u32 s25, 0")
        a("s_cbranch_scc1 L_nomlp")
        a("s_mov_b64 exec, 5")
        a("buffer_load_dword v32, v22, s[40:43], s32 offen sc1")
        a("s_mov_b64 exec, -1")
        a.label("L_nomlp")
    a(f"s_mul_i32 s28, s44, {OXS}")
    a("s_lshl_b32 s27, s25, 7")
    a("s_add_u32 s28, s28, s27")
    a(f"s_add_u32 s28, s28, {W_OX}")
    a("s_lshl_b32 s27, s25, 8")
    a("v_lshlrev_b32 v23, 9, v2")
    a("v_lshl_add_u32 v23, v1, 3, v23")
    a("s_and_b32 s31, s22, 3")
    a("s_lshl_b32 s31, s31, 6")
    a("s_lshr_b32 s3, s44, 2")
    a("s_add_u32 s31, s31, s3")
    a(f"s_mul_i32 s31, s31, {FXS}")
    a("s_add_u32 s31, s31, s27")
    a(f"s_add_u32 s31, s31, {W_FX}")
    a("v_and_b32 v29, 31, v0")
    a("v_lshlrev_b32 v29, 3, v29")
    a("v_lshrrev_b32 v3, 5, v0")
    a("v_lshl_add_u32 v29, v3, 10, v29")
    a(f"s_lshl_b32 s30, s22, {10 if cfg.gpriv else 7}")
    a("s_lshl_b32 s3, s21, 3")
    a("s_add_u32 s30, s30, s3")
    a(f"s_add_u32 s30, s30, {W_GF}")
    a("v_xor_b32 v3, v1, v2")
    a("v_lshlrev_b32 v3, 4, v3")
    a("v_lshl_add_u32 v4, v1, 8, v3")
    a("s_lshl_b32 s3, s25, 14")
    a("v_add_u32 v4, s3, v4")
    for st in range(1, 4): a(f"v_xor_b32 v{4+st}, {st*64}, v4")
    a("v_and_b32 v3, 3, v0")
    a("v_mul_u32_u24 v8, 320, v3")
    a("v_lshl_add_u32 v8, v2, 4, v8")
    a(f"v_add_u32 v8, {L_Q}, v8")
    a("v_lshlrev_b32 v10, 4, v3")
    a(f"v_add_u32 v10, {L_MX}, v10")
    a("s_lshl_b32 s3, s25, 2")
    a("v_add_u32 v9, s3, v10")
    a("v_add_u32 v30, s3, v15")
    a("v_mul_u32_u24 v11, 576, v3")
    a("v_lshrrev_b32 v12, 2, v1")
    a("v_lshl_add_u32 v11, v12, 5, v11")
    a("v_lshl_add_u32 v11, v2, 3, v11")
    a("s_lshl_b32 s3, s25, 7")
    a(f"s_add_u32 s3, s3, {L_P}")
    a("v_add_u32 v11, s3, v11")
    a("v_mul_u32_u24 v12, 576, v12")
    a("v_lshl_add_u32 v12, v2, 4, v12")
    a(f"v_add_u32 v12, {L_P}, v12")
    a("v_lshrrev_b32 v13, 2, v1")
    a("v_and_b32 v14, 1, v2")
    a("v_lshl_or_b32 v14, v14, 2, v13")
    a("v_lshlrev_b32 v14, 1, v14")
    a("v_bfe_u32 v20, v0, 1, 1")
    a("s_lshl_b32 s3, s25, 2")
    a("v_or_b32 v20, s3, v20")
    a("v_xor_b32 v14, v14, v20")
    a("v_lshl_add_u32 v13, v2, 3, v13")
    a("v_lshlrev_b32 v13, 8, v13")
    a("v_lshl_add_u32 v13, v14, 4, v13")
    a("v_and_b32 v14, 1, v0")
    a("v_lshl_add_u32 v13, v14, 3, v13")
    a(f"v_add_u32 v13, {L_V}, v13")
    a("v_xor_b32 v14, 32, v13")
    a("v_lshrrev_b32 v25, 2, v0")
    a(f"v_mul_u32_u24 v24, {OXS}, v25")
    a("v_lshl_add_u32 v24, v3, 4, v24")
    if cfg.one:
        a("v_lshrrev_b32 v24, 1, v0")
        a(f"v_mul_u32_u24 v24, {OXS}, v24")
        a("v_and_b32 v20, 1, v0")
        a("v_lshl_add_u32 v24, v20, 4, v24")
    a(f"s_mul_i32 s29, s21, {32*OXS}")
    a("s_lshr_b32 s27, s22, 2")
    a("s_lshl_b32 s27, s27, 8")
    a("s_add_u32 s29, s29, s27")
    a("s_lshl_b32 s27, s25, 6")
    a("s_add_u32 s29, s29, s27")
    a(f"s_add_u32 s29, s29, {W_OX}")
    a(f"s_add_u32 s33, s29, {16*OXS}")
    a("v_and_b32 v20, 7, v25")
    a("v_lshlrev_b32 v20, 4, v20")
    a("v_lshrrev_b32 v25, 5, v0")
    a("v_lshl_add_u32 v25, v25, 2, v20")
    a(f"v_add_u32 v25, {L_WT}, v25")
    a("v_bfe_u32 v26, v0, 3, 1")
    a("v_mul_u32_u24 v26, 144, v26")
    a("v_and_b32 v27, 1, v2")
    a("v_lshl_add_u32 v26, v27, 5, v26")
    a("v_lshl_add_u32 v26, v3, 2, v26")
    a("v_lshrrev_b32 v27, 5, v0")
    a("v_lshl_add_u32 v26, v27, 1, v26")
    a("s_lshr_b32 s27, s25, 1")
    a("s_lshl_b32 s27, s27, 6")
    a("s_and_b32 s3, s25, 1")
    a("s_lshl_b32 s3, s3, 4")
    a("s_add_u32 s27, s27, s3")
    a(f"s_add_u32 s27, s27, {L_O}")
    a("v_add_u32 v26, s27, v26")
    a("v_bfe_u32 v28, v0, 3, 1" if cfg.sel1 else "v_and_b32 v28, 1, v0")
    a("v_mul_u32_u24 v28, 144, v28")
    a("v_lshl_add_u32 v28, v2, 4, v28")
    a(f"v_add_u32 v28, {L_O}, v28")
    a(f"v_add_u32 v16, {L_W - L_V}, v13")
    a(f"v_add_u32 v17, {L_W - L_V}, v14")
    a("v_mov_b32 v27, 1")
    a("s_waitcnt lgkmcnt(0)")
    epoch_fix()
    a("v_mov_b32 v31, s52")
    a("v_mov_b32 v18, s50")
    a("v_mov_b32 v19, s51")
    if cfg.gat:
        a("s_lshl_b32 s27, s22, 7")
        a(f"s_add_u32 s27, s27, {W_GF}")
        a("s_add_u32 s58, s18, s27")
        a("s_addc_u32 s59, s19, 0")
        a("s_mov_b32 s84, 1")
    a("s_movk_i32 s36, 0x3ff")
    a("s_and_b32 s88, s50, s36")
    a("s_bfe_u32 s89, s50, 0xa000a")
    a("s_bfe_u32 s90, s50, 0xa0014")
    a("s_and_b32 s91, s51, s36")
    a("v_and_b32 v20, 1, v0")
    a("v_cmp_eq_u32 vcc, 1, v20")
    a("v_mov_b32 v124, s88"); a("v_mov_b32 v125, s89"); a("v_mov_b32 v126, s90"); a("v_mov_b32 v127, s91")
    a("v_cndmask_b32 v2, v124, v126, vcc")
    a("v_cndmask_b32 v1, v125, v127, vcc")
    a("s_mov_b32 s47, 0x100000")
    a("s_add_u32 s38, s25, 1")
    a("s_lshl_b32 s38, s38, 14")
    lds_wait_ge("L_kw", "v15", 4, "v20", "s38")
    a("s_waitcnt vmcnt(0)")
    stamp(2)
    for t in range(4):
        for st in range(4):
            base = 32 + (t*4+st)*4
            a(f"ds_read_b128 v[{base}:{base+3}], v{4+st} offset:{t*4096}")
        if t == 1: a("s_waitcnt lgkmcnt(4)")
    lds_wait_ge("L_qw", "v15", 0, "v20", 1)
    stamp(3)
    for st in range(4):
        a(f"ds_read_b128 v[{96+4*st}:{99+4*st}], v8 offset:{st*64}")
    a("v_readfirstlane_b32 s34, v20")
    a("s_waitcnt lgkmcnt(0)")
    for st in range(4):
        for t in range(4):
            base = 32 + (t*4+st)*4
            c = "0" if st == 0 else f"v[{112+4*t}:{115+4*t}]"
            a(f"v_mfma_f32_16x16x32_bf16 v[{112+4*t}:{115+4*t}], v[{base}:{base+3}], v[{96+4*st}:{99+4*st}], {c}")
    a("s_nop 7")
    for t in range(1, 4):
        for r in range(4):
            a(f"v_mov_b32_dpp v{112+r}, v{112+4*t+r} quad_perm:[0,1,2,3] row_mask:0xf bank_mask:{1<<t:#x}")
    if cfg.emu:
        a(f"s_mov_b32 s26, {f2u(128 ** -0.5):#x}")
        a("s_mov_b32 s27, 0xffff0000")
        a("v_cvt_pk_bf16_f32 v96, v112, v113")
        a("v_cvt_pk_bf16_f32 v97, v114, v115")
        a("v_lshlrev_b32 v112, 16, v96"); a("v_and_b32 v113, s27, v96")
        a("v_lshlrev_b32 v114, 16, v97"); a("v_and_b32 v115, s27, v97")
        for r in range(4): a(f"v_mul_f32 v{112+r}, s26, v{112+r}")
        a("v_cvt_pk_bf16_f32 v96, v112, v113")
        a("v_cvt_pk_bf16_f32 v97, v114, v115")
        a("v_lshlrev_b32 v112, 16, v96"); a("v_and_b32 v113, s27, v96")
        a("v_lshlrev_b32 v114, 16, v97"); a("v_and_b32 v115, s27, v97")
    a("v_max3_f32 v20, v112, v113, v114")
    a("v_max_f32 v20, v20, v115")
    def allred(op, v, t):
        for ctl in ("row_ror:4", "row_ror:8"):
            a("s_nop 1")
            a(f"{op}_dpp {v}, {v}, {v} {ctl} row_mask:0xf bank_mask:0xf")
        for swp in ("v_permlane16_swap_b32", "v_permlane32_swap_b32"):
            a(f"v_mov_b32 {t}, {v}")
            a("s_nop 1")
            a(f"{swp} {t}, {v}")
            a("s_nop 1")
            a(f"{op} {v}, {v}, {t}")
    allred("v_max_f32", "v20", "v21")
    a("v_min_u32 v20, -2, v20")
    a("ds_write_b32 v9, v20")
    a.label("L_mw")
    a("ds_read_b128 v[96:99], v10")
    a("s_sub_u32 s47, s47, 1")
    a("s_cbranch_scc1 L_mw_done")
    a("s_waitcnt lgkmcnt(0)")
    a("v_max3_u32 v20, v96, v97, v98")
    a("v_max_u32 v20, v20, v99")
    a("v_cmp_eq_u32 vcc, -1, v20")
    a("s_cbranch_vccnz L_mw")
    a.label("L_mw_done")
    a("s_waitcnt lgkmcnt(0)")
    a(f"s_mov_b32 s26, {f2u(math.log2(math.e) if cfg.emu else SCALE):#x}")
    a("v_max3_f32 v20, v96, v97, v98")
    a("v_max_f32 v20, v20, v99")
    a("v_mul_f32 v20, s26, v20")
    for r in range(4): a(f"v_fma_f32 v{112+r}, v{112+r}, s26, -v20")
    for r in range(4): a(f"v_exp_f32 v{112+r}, v{112+r}")
    a("s_and_b32 s27, s25, 1")
    a("v_cvt_pk_bf16_f32 v96, v112, v113")
    a("v_cvt_pk_bf16_f32 v97, v114, v115")
    a("ds_write_b64 v11, v[96:97]")
    a("v_add_f32 v21, v112, v113")
    a("v_add_f32 v98, v114, v115")
    a("v_add_f32 v21, v21, v98")
    allred("v_add_f32", "v21", "v98")
    a("s_lshl_b32 s27, s27, 3")
    a("v_lshlrev_b32 v20, s27, v20")
    a("v_bfi_b32 v100, s53, v31, v20")
    a("v_mov_b32 v101, s50")
    a("v_bfi_b32 v102, s53, v31, v21")
    a("v_mov_b32 v103, s50")
    a("s_mov_b64 exec, 0xf")
    a("s_cmp_eq_u32 s34, 2")
    a("s_cbranch_scc0 L_mlslow")
    a("buffer_store_dwordx4 v[100:103], v22, s[40:43], s32 offen")
    a("s_branch L_mlpub")
    a.label("L_mlslow")
    a("buffer_store_dwordx4 v[100:103], v22, s[40:43], s32 offen sc1")
    a.label("L_mlpub")
    a("s_mov_b64 exec, -1")
    a("ds_write_b32 v30, v27 offset:16")
    oxs = ("s29", "s33", "s35", "s39")
    def ox_loads():
        for k in range(4):
            a(f"buffer_load_dwordx4 v[{64+4*k}:{67+4*k}], v24, s[40:43], {oxs[k]} offen sc1")
    stamp(4)
    a("v_mov_b32 v121, s50")
    a("v_mov_b32 v123, s50")
    pflag_wait("L_pw", "v15", 96, "v20")
    stamp(5)
    for u in range(8):
        a(f"ds_read_b128 v[{32+4*u}:{35+4*u}], v12 offset:{u*64}")
    def wo_reads():
        for e in range(2):
            for ks in range(2):
                base = 80 + (e*2+ks)*4
                a(f"ds_read_b64_tr_b16 v[{base}:{base+1}], v{16+e} offset:{ks*8192}")
                a(f"ds_read_b64_tr_b16 v[{base+2}:{base+3}], v{16+e} offset:{ks*8192+1024}")
    def v_mfma(u):
        vb = 96 + (u & 1)*8
        for e in range(2):
            c = "0" if u == 0 else f"v[{112+4*e}:{115+4*e}]"
            a(f"v_mfma_f32_16x16x32_bf16 v[{112+4*e}:{115+4*e}], v[{32+4*u}:{35+4*u}], v[{vb+4*e}:{vb+4*e+3}], {c}")
    for u in range(8):
        thr = 65536 + (u+1)*8192
        a("ds_read_b32 v20, v15 offset:4")
        a("s_waitcnt lgkmcnt(0)")
        if u > 0: v_mfma(u-1)
        a(f"v_cmp_gt_i32 vcc, {thr}, v20")
        a(f"s_cbranch_vccz L_vw{u}_done")
        lds_wait_ge(f"L_vw{u}", "v15", 4, "v20", thr, sleep=(1 if u < 6 else 0))
        if u == 7: stamp(6)
        vb = 96 + (u & 1)*8
        for e in range(2):
            a(f"ds_read_b64_tr_b16 v[{vb+4*e}:{vb+4*e+1}], v{13+e} offset:{u*8192}")
            a(f"ds_read_b64_tr_b16 v[{vb+4*e+2}:{vb+4*e+3}], v{13+e} offset:{u*8192+1024}")
    a("s_waitcnt lgkmcnt(2)")
    a("v_mfma_f32_16x16x32_bf16 v[112:115], v[60:63], v[104:107], v[112:115]")
    a("s_waitcnt lgkmcnt(0)")
    a("v_mfma_f32_16x16x32_bf16 v[116:119], v[60:63], v[108:111], v[116:119]")
    a("s_cmp_eq_u32 s34, 2")
    a("s_mov_b32 s47, 0x20000")
    a("s_nop 4")
    a("v_bfi_b32 v122, s36, v2, v112")
    a("v_bfi_b32 v123, s36, v1, v116")
    a("s_cbranch_scc0 L_oslow")
    a("buffer_store_dwordx2 v[122:123], v23, s[40:43], s28 offen")
    a("s_branch L_opub")
    a.label("L_oslow")
    a("buffer_store_dwordx2 v[122:123], v23, s[40:43], s28 offen sc1")
    a.label("L_opub")
    stamp(7)
    LA, LB, R = 64, 48, 32
    def oxl(base):
        for k in range(2):
            a(f"buffer_load_dwordx4 v[{base+4*k}:{base+3+4*k}], v24, s[40:43], {oxs[k]} offen sc1")
    def oxc(base, pend):
        for k in range(2):
            b0 = base + 4*k
            a(f"s_waitcnt vmcnt({pend + 1 - k})")
            for j in range(4):
                a(f"v_xor_b32 v{R+4*k+j}, s{88+j}, v{b0+j}")
            if k == 0:
                a(f"v_or3_b32 v40, v{R}, v{R+1}, v{R+2}")
            else:
                a(f"v_or3_b32 v40, v40, v{R+3}, v{R+4}")
                a(f"v_or3_b32 v41, v{R+5}, v{R+6}, v{R+7}")
        a("v_bitop3_b32 v40, v40, v41, s36 bitop3:0xa8")
        a("v_cmp_ne_u32 vcc, 0, v40")
        a("s_mov_b64 exec, vcc")
    if cfg.one:
        def oxl(base):
            a(f"buffer_load_dwordx4 v[{base}:{base+3}], v24, s[40:43], {oxs[0]} offen sc1")
        def oxc(base, pend):
            a(f"s_waitcnt vmcnt({pend//2})")
            for j in range(4):
                a(f"v_xor_b32 v{R+j}, s{88+j}, v{base+j}")
            a(f"v_or3_b32 v40, v{R}, v{R+1}, v{R+2}")
            a(f"v_bitop3_b32 v40, v40, v{R+3}, s36 bitop3:0xa8")
            a("v_cmp_ne_u32 vcc, 0, v40")
            a("s_mov_b64 exec, vcc")
    def wread():
        a("s_mov_b64 exec, -1")
        a("ds_read_b32 v20, v15 offset:8")
        a("ds_read2_b32 v[96:97], v25 offset0:0 offset1:2")
        a("s_mov_b64 exec, vcc")
    a("s_mov_b32 s46, 0x100000")
    oxl(LA)
    a("s_waitcnt vmcnt(1)")
    lds_wait_ge("L_wow", "v15", 4, "v21", TOTAL, cnt="s46", sleep=0)
    wo_reads()
    a("ds_read_b32 v20, v15 offset:8")
    a("ds_read2_b32 v[96:97], v25 offset0:0 offset1:2")
    oxl(LB)
    oxc(LA, 2)
    a("s_cbranch_vccz L_ox_done")
    a.label("L_oxpoll")
    oxl(LA)
    wread()
    oxc(LB, 2)
    a("s_cbranch_vccz L_ox_done")
    oxl(LB)
    wread()
    oxc(LA, 2)
    a("s_cbranch_vccz L_ox_done")
    a("s_sub_u32 s47, s47, 1")
    a("s_cbranch_scc0 L_oxpoll")
    a.label("L_ox_done")
    a("s_mov_b64 exec, -1")
    def gf_store():
        if cfg.gall < 3:
            a(f"s_cmp_gt_u32 s25, {cfg.gall}")
            a("s_cbranch_scc1 L_nogf")
        if cfg.gat:
            a("ds_write_b32 v15, v27 offset:48")
        else:
            a("s_mov_b64 exec, 1")
            a(f"buffer_store_dwordx2 v[18:19], v22, s[40:43], s30 offen {cfg.gfs}")
            a("s_mov_b64 exec, -1")
        a.label("L_nogf")
    if cfg.gat: a("s_waitcnt lgkmcnt(0)")
    if cfg.gpos == 0: gf_store()
    stamp(8)
    if not cfg.gat: a("s_waitcnt lgkmcnt(0)")
    a("v_cmp_eq_u32 vcc, 0, v20")
    a("s_cbranch_vccz L_wok")
    lds_wait_ge("L_ww", "v15", 8, "v20", 1, cnt="s46", sleep=0)
    a("ds_read2_b32 v[96:97], v25 offset0:0 offset1:2")
    a("s_waitcnt lgkmcnt(0)")
    a.label("L_wok")
    a("v_pk_mul_f32 v[32:33], v[32:33], v[96:97] op_sel_hi:[1,0]")
    a("v_pk_mul_f32 v[34:35], v[34:35], v[96:97] op_sel_hi:[1,0]")
    a("v_pk_mul_f32 v[36:37], v[36:37], v[96:97] op_sel:[0,1] op_sel_hi:[1,1]")
    a("v_pk_mul_f32 v[38:39], v[38:39], v[96:97] op_sel:[0,1] op_sel_hi:[1,1]")
    a("v_permlane32_swap_b32 v32, v34")
    a("v_permlane32_swap_b32 v33, v35")
    a("v_permlane32_swap_b32 v36, v38")
    a("v_permlane32_swap_b32 v37, v39")
    a("v_pk_add_f32 v[32:33], v[32:33], v[34:35]")
    a("v_pk_add_f32 v[36:37], v[36:37], v[38:39]")
    a("s_nop 0")
    a("v_permlane16_swap_b32 v32, v33")
    a("v_permlane16_swap_b32 v36, v37")
    a("v_add_f32 v33, v32, v33")
    a("v_add_f32 v36, v36, v37")
    a("s_nop 0")
    a("v_add_f32_dpp v32, v33, v33 row_ror:8 row_mask:0xf bank_mask:0x3")
    a("v_add_f32_dpp v32, v36, v36 row_ror:8 row_mask:0xf bank_mask:0xc")
    a("s_nop 1")
    a("v_add_f32_dpp v33, v32, v32 row_shl:4 row_mask:0xf bank_mask:0x5")
    a("v_add_f32_dpp v33, v32, v32 row_shr:4 row_mask:0xf bank_mask:0xa")
    a("v_cvt_pk_bf16_f32 v32, v33, v33")
    a("ds_write_b16 v26, v32")
    a("ds_write_b32 v30, v27 offset:32")
    a("s_mov_b32 s47, 0x100000")
    a.label("L_ow")
    a("ds_read_b128 v[108:111], v15 offset:32")
    a("ds_read_b128 v[100:103], v28")
    a("ds_read_b128 v[104:107], v28 offset:64")
    if cfg.gpos == 1:
        gf_store()
        a("s_mov_b32 s25, 1")
    a("s_sub_u32 s47, s47, 1")
    a("s_cbranch_scc1 L_ow_done")
    a("s_waitcnt lgkmcnt(2)")
    a("v_bitop3_b32 v20, v108, v109, v110 bitop3:0x80")
    a("v_and_b32 v20, v20, v111")
    a("v_cmp_eq_u32 vcc, 0, v20")
    a("s_cbranch_vccnz L_ow")
    a.label("L_ow_done")
    if cfg.gpos == 2: gf_store()
    a("s_waitcnt lgkmcnt(1)")
    a("v_mfma_f32_16x16x32_bf16 v[112:115], v[100:103], v[80:83], 0")
    a("v_mfma_f32_16x16x32_bf16 v[116:119], v[100:103], v[88:91], 0")
    a("s_waitcnt lgkmcnt(0)")
    a("v_mfma_f32_16x16x32_bf16 v[112:115], v[104:107], v[84:87], v[112:115]")
    a("v_mfma_f32_16x16x32_bf16 v[116:119], v[104:107], v[92:95], v[116:119]")
    if cfg.sel1:
        a("s_nop 7")
        a("v_mov_b32_dpp v112, v116 quad_perm:[0,1,2,3] row_mask:0xa bank_mask:0xf")
    else:
        a("s_nop 6")
        a("v_mov_b32_dpp v112, v113 quad_perm:[0,1,2,3] row_mask:0x4 bank_mask:0xf")
        a("v_mov_b32_dpp v112, v116 quad_perm:[0,1,2,3] row_mask:0x2 bank_mask:0xf")
        a("v_mov_b32_dpp v112, v117 quad_perm:[0,1,2,3] row_mask:0x8 bank_mask:0xf")
    a("v_bfi_b32 v120, s53, v31, v112")
    a(f"buffer_store_dwordx2 v[120:121], v29, s[40:43], s31 offen {cfg.fxs}")
    if cfg.gpos == 3: gf_store()
    if cfg.wb:
        a("s_lshl_b32 s3, s22, 2")
        a("s_add_u32 s3, s3, s25")
        a("s_cmp_lg_u32 s3, 3")
        a("s_cbranch_scc1 L_end")
        a("buffer_wbl2 sc1")
    stamp(9)
    if cfg.stamps and cfg.nocst: a("s_sleep 60")
    write_stamps(10)
    a.label("L_end")
    a("s_endpgm")
    return wrap(a.text(), 256, BLOCK, LDS_BYTES, 128)
```

```python
import re, sys
import gen22 as G
from build import build
src = G.gen(G.Cfg())
src = src.replace("s_mov_b32 s46, 0x100000", "s_mov_b32 s46, 0x1000000").replace("s_mov_b32 s47, 0x100000", "s_mov_b32 s47, 0x1000000").replace("s_mov_b32 s47, 0x20000", "s_mov_b32 s47, 0x200000").replace("s_cmp_lt_u32 s47, 0x20000", "s_cmp_lt_u32 s47, 0x100000")
ref = open("standalone__sliding_block_cached__decode.s.ref").read().split("\n")
hdr = [l for l in ref[:9]]
doc = """;
; Sliding-window GQA decode (q = x@wq, softmax(q K^T) V over the last 4096 keys, out = o@wo) in ONE launch.
; 256 workgroups (one per CU), wg = r*8+g: kv head g, batch b = r>>4, key split s = r&15 (256 keys).
; 6 waves per workgroup:
;   wave 0  q-projection partial (128 rows x 64 cols of wq, MFMA), exchange of q, later the split-combine weights
;   wave 1  loader: K, V, wo slice -> LDS by LDS-DMA (progress word in LDS), then final reducer of 4 outputs
;   wave 2-5 QK^T, softmax (true max of the split, flash-decoding combine), PV, split combine, out-projection
; Hand-offs between workgroups go through d_ws as self-validating words: every datum carries tag bits of a
; per-launch epoch (old epoch word in d_ws + constant; written back at the end), tags are stripped before use.
; Inside a kv-head group plain stores (shared L2) are used only after the group has verified at run time
; (exchanged XCC ids) that all its workgroups sit on one XCD; otherwise write-through (sc1) stores are used.
; All spins are bounded.""".split("\n")
lines = src.split("\n")
assert lines[0].startswith("; @launch")
notes = {
 "L_qstart:": "; ---- wave 0: LDS flag init, x fragments, wq slice -> LDS",
 "L_loader:": "; ---- wave 1: stream K, V, wo into LDS; publish progress; final reduction",
 "L_gate:": "; wait (uncached scalar poll, hint only) until every group has combined its splits",
 "L_fpoll:": "; gather the 64 partial outputs (tag-checked)",
 "L_qrest:": "; ---- wave 0 continued: q partial MFMA, publish, gather q, combine weights",
 "L_qpoll:": "; gather q partials of this (g,b) + XCC ids of the group",
 "L_mlpoll:": "; gather (max, sum) of all splits of this workgroup's out-projection head",
 "L_compute:": "; ---- waves 2..5",
 "L_mw:": "; exchange per-wave maxima through LDS",
 "L_pw:": "; all P tiles written",
 "L_oxpoll:": "; gather O partials of the 32 splits (two polls in flight)",
 "L_ow:": "; exchange combined o (bf16) through LDS, out-projection MFMA",
}
out = []
for l in lines[1:]:
    if l in notes: out.append(notes[l])
    out.append(l)
txt = "\n".join(hdr + doc + [lines[0]] + out)
dst = "standalone__sliding_block_cached__decode.s"
open(dst, "w").write(txt)
open("final.s", "w").write(txt)
build("final.s")
```
